```python
import torch

def _softmax(x, axis=-1):
    return torch.softmax(x, dim=axis)
def _gelu(x):
    return torch.nn.functional.gelu(x, approximate="tanh")
def _silu(x):
    return torch.nn.functional.silu(x)
def _sigmoid(x):
    return torch.sigmoid(x)
def _layernorm(x, axis=-1, eps=1e-5):
    m = x.mean(dim=axis, keepdim=True)
    v = x.var(dim=axis, keepdim=True, unbiased=False)
    return (x - m) / torch.sqrt(v + eps)
def _scatter_add(tgt, idx, src, axis=0):
    return tgt.clone().index_add_(axis, idx, src)
def _segment_sum(src, seg, n):
    out = torch.zeros((n,) + src.shape[1:], dtype=src.dtype)
    return out.index_add_(0, seg, src)
def _pad(x, pw):
    flat = tuple(v for pair in reversed(pw) for v in pair)
    return torch.nn.functional.pad(x, flat)

kernel_name = 'interleave_layers__mha_block_cached__glu_gated_reglu__decode'

def setup_inputs():

    _w = (lambda a: (lambda t: t.to(torch.bfloat16) if t.is_floating_point() else t)(torch.as_tensor(a)))
    def _A_setup():
        B, Sq, D = 4, 1, 448
        H, Sk, Dh = 16, 4096, 256
        return {
            "x": _w((lambda *s: torch.randn(*s, dtype=torch.bfloat16) * 0.05)(B, Sq, D)),
            "k_cache": _w((lambda *s: torch.randn(*s, dtype=torch.bfloat16) * 0.8)(B, H, Sk, Dh)),
            "v_cache": _w((lambda *s: torch.randn(*s, dtype=torch.bfloat16) * 0.8)(B, H, Sk, Dh)),
            "wq": _w((lambda *s: torch.randn(*s, dtype=torch.bfloat16) * 0.8)(D, H * Dh) * (D ** -0.5)),
            "wo": _w((lambda *s: torch.randn(*s, dtype=torch.bfloat16) * 0.8)(H * Dh, D) * ((H * Dh) ** -0.5)),
        }
    _A_in = _A_setup()

    def _B_setup():
        B, S, D, F = 4, 1, 448, 1792
        return {
            "x": _w((lambda *s: torch.randn(*s, dtype=torch.bfloat16) * 0.05)(B, S, D)),
            "W_gate": _w((lambda *s: torch.randn(*s, dtype=torch.bfloat16) * 0.2)(D, F) * (2.0 / D) ** 0.5),
            "W_up": _w((lambda *s: torch.randn(*s, dtype=torch.bfloat16) * 0.2)(D, F) * (2.0 / D) ** 0.5),
            "W_down": _w((lambda *s: torch.randn(*s, dtype=torch.bfloat16) * 0.2)(F, D) * (1.0 / F) ** 0.5),
        }
    _B_in = _B_setup()

    return {
        "A_x": _A_in["x"],
        "A_k_cache": _A_in["k_cache"],
        "A_v_cache": _A_in["v_cache"],
        "A_wq": _A_in["wq"],
        "A_wo": _A_in["wo"],
        "B_x": _B_in["x"],
        "B_W_gate": _B_in["W_gate"],
        "B_W_up": _B_in["W_up"],
        "B_W_down": _B_in["W_down"],
    }

def reference(A_x, A_k_cache, A_v_cache, A_wq, A_wo, B_x, B_W_gate, B_W_up, B_W_down):
    def _A_ref(x, k_cache, v_cache, wq, wo):
        B, Sq, D = x.shape
        H, Dh = 16, 256
        q = (lambda x, *d: x.permute(*d))((x @ wq).reshape(B, Sq, H, Dh), 0, 2, 1, 3)
        scores = torch.einsum("bhqd,bhkd->bhqk", q, k_cache) * (Dh ** -0.5)
        p = _softmax(scores, axis=-1)
        o = torch.einsum("bhqk,bhkd->bhqd", p, v_cache)
        return (lambda x, *d: x.permute(*d))(o, 0, 2, 1, 3).reshape(B, Sq, H * Dh) @ wo

    def _B_ref(x, W_gate, W_up, W_down):
        gate = torch.einsum("bsd,df->bsf", x, W_gate)
        up = torch.einsum("bsd,df->bsf", x, W_up)
        gate = gate * (lambda x, dt: x.to(dt))(gate > 0, gate.dtype)
        h = gate * up
        return torch.einsum("bsf,fd->bsd", h, W_down)

    x = A_x
    x = x + _A_ref(_layernorm(x, axis=-1), A_k_cache, A_v_cache, A_wq, A_wo)
    x = x + _B_ref(_layernorm(x, axis=-1), B_W_gate, B_W_up, B_W_down)
    x = x + _A_ref(_layernorm(x, axis=-1), A_k_cache, A_v_cache, A_wq, A_wo)
    x = x + _B_ref(_layernorm(x, axis=-1), B_W_gate, B_W_up, B_W_down)
    return x
```

```python
import re

REG_RE = re.compile(r'^(-|\|)?([vas])(\d+)$')
RNG_RE = re.compile(r'^(-|\|)?([vas])\[(\d+):(\d+)\]$')
TRANS = ('v_exp_f32', 'v_log_f32', 'v_rcp_f32', 'v_rsq_f32', 'v_sqrt_f32')

def regs_of(op):
    op = op.strip()
    m = REG_RE.match(op)
    if m: return [(m.group(2), int(m.group(3)))]
    m = RNG_RE.match(op)
    if m: return [(m.group(2), i) for i in range(int(m.group(3)), int(m.group(4)) + 1)]
    if op == 'vcc': return [('s', 106), ('s', 107)]
    if op == 'vcc_lo': return [('s', 106)]
    if op == 'vcc_hi': return [('s', 107)]
    if op == 'exec': return [('s', 126), ('s', 127)]
    if op == 'm0': return [('s', 124)]
    return []

def split_ops(s):
    out = []; depth = 0; cur = ''
    for ch in s:
        if ch == '[': depth += 1
        if ch == ']': depth -= 1
        if ch == ',' and depth == 0:
            out.append(cur.strip()); cur = ''
        else:
            cur += ch
    if cur.strip(): out.append(cur.strip())
    return out

class I:
    __slots__ = ('text', 'mn', 'kind', 'rd', 'wr', 'A', 'B', 'C', 'dpp', 'tag', 'deps', 'wide', 'lds', 'states', 'nocount', 'sdata')
    def __init__(self, text, tag=None, deps=(), nocount=False):
        self.text = text; self.tag = tag; self.deps = list(deps); self.nocount = nocount
        self.rd = []; self.wr = []; self.A = self.B = self.C = (); self.dpp = False; self.wide = False; self.lds = False
        self.states = 1; self.sdata = []
        t = text.split(';')[0].strip()
        if not t or t.endswith(':') or t.startswith('.'):
            self.mn = ''; self.kind = 'label' if t.endswith(':') else 'none'; self.states = 0
            return
        parts = t.split(None, 1)
        mn = parts[0]; self.mn = mn
        rest = parts[1] if len(parts) > 1 else ''
        ops = split_ops(rest)
        mods = ''
        if ops:
            last = ops[-1].split(None, 1)
            ops[-1] = last[0]
            if len(last) > 1: mods = last[1]
        R = [regs_of(o) for o in ops]
        flat = lambda L: [r for x in L for r in x]
        if mn.startswith('v_mfma'):
            self.kind = 'mfma'; self.wr = R[0]; self.A = R[1]; self.B = R[2]; self.C = R[3]; self.rd = R[1] + R[2] + R[3]
        elif mn.startswith('v_'):
            self.kind = 'valu'
            self.dpp = mn.endswith('_dpp')
            if mn.startswith('v_permlane'):
                self.wr = flat(R); self.rd = flat(R)
            elif mn.startswith('v_cmp'):
                self.wr = R[0]; self.rd = flat(R[1:])
            elif mn == 'v_nop':
                pass
            else:
                self.wr = R[0]; self.rd = flat(R[1:])
                if self.dpp or mn.startswith(('v_fmac', 'v_dot2c', 'v_writelane', 'v_mac')): self.rd = self.rd + R[0]
                if mn.startswith('v_cndmask') and len(ops) == 3: self.rd = self.rd + regs_of('vcc')
                if '_co_' in mn: self.wr = R[0] + R[1]; self.rd = flat(R[2:])
        elif mn.startswith('buffer_'):
            self.kind = 'vmem'
            ml = mods.split()
            if 'lds' in ml:
                self.lds = True; self.rd = flat(R) + regs_of('m0')
            elif mn.startswith('buffer_load'):
                self.wr = R[0]; self.rd = flat(R[1:])
                if 'd16' in mn: self.rd = self.rd + R[0]
            else:
                self.rd = flat(R); self.sdata = R[0]
                self.wide = mn.endswith(('x3', 'x4'))
                if mn.startswith('buffer_atomic') and 'sc0' in ml: self.wr = R[0][:1]
        elif mn.startswith('ds_'):
            self.kind = 'ds'
            if mn.startswith(('ds_read', 'ds_bpermute', 'ds_permute')):
                self.wr = R[0]; self.rd = flat(R[1:])
            else:
                self.rd = flat(R)
        elif mn.startswith(('s_load', 's_memrealtime', 's_memtime')):
            self.kind = 'smem'; self.wr = R[0]; self.rd = flat(R[1:])
        elif mn.startswith('s_'):
            self.kind = 'salu'
            if mn == 's_nop': self.states = int(ops[0], 0) + 1
            elif mn.startswith(('s_cmp', 's_cbranch', 's_branch', 's_waitcnt', 's_barrier', 's_endpgm', 's_sleep', 's_setprio', 's_bitcmp')):
                self.rd = flat(R)
            else:
                self.wr = R[0]; self.rd = flat(R[1:])
                if 'saveexec' in mn: self.wr = self.wr + regs_of('exec')
        else:
            raise ValueError('unknown instr ' + text)

def ov(a, b):
    if not a or not b: return False
    sb = set(b)
    return any(x in sb for x in a)

def need_states(p, c):
    n = 0
    cv = c.kind in ('valu',)
    if p.kind == 'valu':
        pv = [r for r in p.wr if r[0] != 's']; ps = [r for r in p.wr if r[0] == 's']
        if pv:
            if c.kind == 'mfma' and ov(pv, c.rd): n = max(n, 2)
            if cv and c.dpp and ov(pv, c.rd): n = max(n, 2)
            if cv and c.mn.startswith('v_permlane') and ov(pv, c.rd): n = max(n, 2)
            if cv and c.mn.startswith(('v_readlane', 'v_readfirstlane')) and ov(pv, c.rd): n = max(n, 1)
            if p.mn.startswith(TRANS) and ov(pv, c.rd + c.wr): n = max(n, 1)
            if p.mn.startswith('v_dot'):
                if c.mn == p.mn:
                    ops = split_ops(c.text.split(None, 1)[1])
                    ab = regs_of(ops[1].split()[0]) + regs_of(ops[2].split()[0])
                    if ov(pv, ab): n = max(n, 3)
                elif ov(pv, c.rd + c.wr): n = max(n, 3)
            if 'op_sel' in p.text and cv and ov(pv, c.rd + c.wr): n = max(n, 1)
        if ps:
            if cv and ov(ps, c.rd):
                n = max(n, 4 if c.mn.startswith(('v_readlane', 'v_writelane')) else 2)
            if c.kind == 'vmem' and ov(ps, c.rd): n = max(n, 5)
            if c.kind == 'mfma' and ov(ps, c.rd): n = max(n, 2)
    elif p.kind == 'mfma':
        if c.kind == 'mfma':
            if ov(p.wr, c.A) or ov(p.wr, c.B): n = max(n, 8)
            if ov(p.wr, c.C) and list(p.wr) != list(c.C): n = max(n, 6)
            if ov(p.wr, c.wr) and list(p.wr) != list(c.wr): n = max(n, 6)
        elif c.kind in ('valu', 'vmem', 'ds'):
            if ov(p.wr, c.rd + c.wr): n = max(n, 8)
            if ov(p.C, c.wr): n = max(n, 3)
    elif p.kind == 'salu':
        if c.kind == 'vmem' and c.lds and ov(p.wr, regs_of('m0')): n = max(n, 1)
    elif p.kind == 'vmem':
        if p.wide and ov(p.sdata, c.wr): n = max(n, 2 if c.kind in ('valu', 'mfma') else 1)
    return n

class Prog:
    def __init__(self):
        self.out = []
        self.hist = []
        self.vq = []
        self.lq = []
        self.pend = {}
        self.tags = {}
        self.nid = 0
        self.ninstr = 0
        self.smem_out = False
    def snapshot(self):
        inv = {v: k for k, v in self.tags.items()}
        regs = {}
        for r, k in self.pend.items(): regs.setdefault(k, []).append(r)
        f = lambda q, c: [(inv.get((c, i)), tuple(sorted(regs.get((c, i), [])))) for i in q]
        return (f(self.vq, 'v'), f(self.lq, 'l'))
    def restore(self, snap):
        self.vq = []; self.lq = []; self.pend = {}
        for c, lst, q in (('v', snap[0], self.vq), ('l', snap[1], self.lq)):
            for tag, regs in lst:
                self.nid += 1; q.append(self.nid)
                if tag is not None: self.tags[tag] = (c, self.nid)
                for r in regs: self.pend[r] = (c, self.nid)
    def reset_queues(self):
        self.vq = []; self.lq = []; self.pend = {}; self.smem_out = False
    def _raw(self, ins):
        self.out.append(ins.text)
        if ins.states:
            self.hist.append(ins); self.ninstr += 1
            if len(self.hist) > 12: self.hist.pop(0)
    def _retire(self, c, n):
        q = self.vq if c == 'v' else self.lq
        while len(q) > n:
            i = q.pop(0)
            for r in [r for r, k in self.pend.items() if k == (c, i)]: del self.pend[r]
    def _waits_for(self, keys):
        nv = nl = None
        for c, i in keys:
            q = self.vq if c == 'v' else self.lq
            if i in q:
                n = len(q) - 1 - q.index(i)
                if c == 'v': nv = n if nv is None else min(nv, n)
                else: nl = n if nl is None else min(nl, n)
        s = []
        if nv is not None:
            nv = min(nv, 63); s.append(f'vmcnt({nv})'); self._retire('v', nv)
        if nl is not None:
            if self.smem_out: nl = 0; self.smem_out = False
            nl = min(nl, 15); s.append(f'lgkmcnt({nl})'); self._retire('l', nl)
        if s: self._raw(I('s_waitcnt ' + ' '.join(s)))
    def wait(self, *tags):
        self._waits_for([self.tags[t] for t in tags if t in self.tags])
    def wait_vm(self, n):
        if len(self.vq) > n:
            self._raw(I(f's_waitcnt vmcnt({n})')); self._retire('v', n)
    def wait_all(self, vm=True, lg=True, force=False):
        s = []
        if vm and (self.vq or force): s.append('vmcnt(0)'); self._retire('v', 0)
        if lg and (self.lq or force or self.smem_out): s.append('lgkmcnt(0)'); self._retire('l', 0); self.smem_out = False
        if s: self._raw(I('s_waitcnt ' + ' '.join(s)))
    def flush(self, n=8):
        need = 0; d = 0
        for p in reversed(self.hist):
            mx = {'mfma': 8, 'valu': 5 if any(r[0] == 's' for r in p.wr) else 3, 'vmem': 2 if p.wide else 0, 'salu': 1}.get(p.kind, 0)
            need = max(need, mx - d); d += p.states
        if need > 0: self._raw(I(f's_nop {need - 1}'))
    def e(self, x, tag=None, deps=(), nocount=False):
        if isinstance(x, (list, tuple)):
            for y in x: self.e(y)
            return
        if callable(x):
            x(self); return
        ins = x if isinstance(x, I) else I(x, tag, deps, nocount)
        if ins.kind in ('label', 'none'):
            self._raw(ins); return
        keys = [self.pend[r] for r in ins.rd + ins.wr if r in self.pend]
        keys += [self.tags[t] for t in ins.deps if t in self.tags]
        if keys: self._waits_for(keys)
        need = 0; d = 0
        for p in reversed(self.hist):
            need = max(need, need_states(p, ins) - d); d += p.states
            if d > 10: break
        if need > 0: self._raw(I(f's_nop {need - 1}'))
        self._raw(ins)
        if ins.nocount: return
        if ins.kind == 'vmem':
            self.nid += 1; self.vq.append(self.nid)
            for r in ins.wr: self.pend[r] = ('v', self.nid)
            if ins.tag is not None: self.tags[ins.tag] = ('v', self.nid)
        elif ins.kind == 'ds':
            self.nid += 1; self.lq.append(self.nid)
            for r in ins.wr: self.pend[r] = ('l', self.nid)
            if ins.tag is not None: self.tags[ins.tag] = ('l', self.nid)
        elif ins.kind == 'smem':
            self.nid += 1; self.lq.append(self.nid); self.smem_out = True
            for r in ins.wr: self.pend[r] = ('l', self.nid)

def weave(main, side, per=2, start=0):
    out = []; side = list(side); k = 0
    for x in main:
        out.append(x)
        t = x.text if isinstance(x, I) else (x if isinstance(x, str) else '')
        if t.startswith('v_mfma'):
            if k >= start:
                for _ in range(per):
                    if side: out.append(side.pop(0))
            k += 1
    return out + side

def vr(b, n=1, k='v'):
    return f'{k}{b}' if n == 1 else f'{k}[{b}:{b + n - 1}]'
```

```python
from asmlib import *
from common import *
import math

vK, vV, vL, vQ, vO, M1, L1, vSTAMP = range(8)
MASK = 8; Q = 12; S1 = 20; S2 = 25; TA = 30; TB = 31
ACC1 = 32; U = 40; STG = 52; BX = 60
M2, L2, TC, TD = 48, 49, 50, 51
KS, VS, WS, DBG = 8, 12, 16, 20
sW = 3
sOff, sBase, sLast, sBias, sQ1, sQ2, sO1, sO2, sPh, sLds, sBud, sSc, sCnt = range(24, 37)
sStamp = 38; sSt = 40
MF = 'v_mfma_f32_16x16x32_bf16'
DPPALL = 'row_mask:0xf bank_mask:0xf'
OOB = 0x40000000
def srd(b): return f's[{b}:{b+3}]'

KL = [k for k in range(38) if k % 4 == 1]
VL = [38 + k for k in range(38) if k % 4 == 0]
def slot_map():
    m = {}
    r = 0
    for s in range(2):
        l = 0
        for k in VL + KL:
            m[(s, k)] = ('l', s * 20 + l); l += 1
        for k in range(76):
            if (s, k) not in m:
                m[(s, k)] = ('r', r); r += 1
    assert r == 112
    return m
SM = slot_map()
def treg(r): return vr(64 + 4 * r, 4) if r < 48 else vr(4 * (r - 48), 4, 'a')

class Use:
    def __init__(self, fmt, s, k, p1): self.fmt = fmt; self.s = s; self.k = k; self.p1 = p1
class Mark:
    def __init__(self, name): self.name = name

def stamp_items(cfg):
    if not cfg.get('stamps'): return []
    return [f's_memrealtime s[{sSt}:{sSt+1}]', lambda p: p.wait_all(vm=False), f's_mov_b32 m0, s{sStamp}',
            f'v_writelane_b32 v{vSTAMP}, s{sSt}, m0', f's_add_u32 s{sStamp}, s{sStamp}, 1']

def load_items(s, k, cfg):
    o = []
    kk = k % 38
    if k == 38 or k == 0: o.append(f's_mov_b32 s{sOff}, s{sBase}')
    elif kk == 36: o.append(f's_add_u32 s{sOff}, s{sOff}, s{sLast}')
    elif kk % 4 == 0: o.append(f's_add_u32 s{sOff}, s{sOff}, 4096')
    off = ((kk >> 1) & 1) * 2048 + (kk & 1) * 256
    vo, sr = (vK, KS) if k < 38 else (vV, VS)
    kind, idx = SM[(s, k)]
    if kind == 'l':
        o.append(f's_add_u32 m0, s{sLds}, {idx * 1024 - off}')
        o.append(I(f'buffer_load_dwordx4 v{vo}, {srd(sr)}, s{sOff} offen offset:{off} nt lds', tag=('ld', s, k)))
    else:
        o.append(I(f'buffer_load_dwordx4 {treg(idx)}, v{vo}, {srd(sr)}, s{sOff} offen offset:{off} nt', tag=('ld', s, k)))
    return o

def qk_units(s, S, p1):
    units = []
    acc = lambda t: U + 4 * (t % 3)
    for t in range(22):
        u = []
        if t < 19:
            a = vr(acc(t), 4)
            u.append(Use(f'{MF} {a}, %s, {vr(Q, 4)}, 0', s, 2 * t, p1))
            u.append(Use(f'{MF} {a}, %s, {vr(Q + 4, 4)}, {a}', s, 2 * t + 1, p1))
        if t == 2: u.append(f'v_mov_b32 v{S + 4}, 0xff800000')
        c = t - 3
        if c >= 0:
            u.append(f'v_add_f32_dpp v{S + (c >> 2)}, v{TB}, v{TA} quad_perm:[2,2,2,2] row_mask:0xf bank_mask:{hex(1 << (c & 3))}')
        c = t - 2
        if 0 <= c < 19:
            a = acc(c)
            u.append(f'v_add_f32_dpp v{TA}, v{a + 1}, v{a} quad_perm:[1,1,1,1] {DPPALL}')
            u.append(f'v_add_f32_dpp v{TB}, v{a + 3}, v{a + 2} quad_perm:[3,3,3,3] {DPPALL}')
            if c == 18: u.append(f'v_add_f32 v{TA}, s{sBias}, v{TA}')
        units.append(u)
    return units

def red(op, x, t):
    return [f'{op}_dpp v{x}, v{x}, v{x} row_ror:4 {DPPALL}', f'{op}_dpp v{x}, v{x}, v{x} row_ror:8 {DPPALL}',
            f'v_mov_b32 v{t}, v{x}', f'v_permlane16_swap_b32 v{x}, v{t}', f'{op} v{x}, v{x}, v{t}',
            f'v_mov_b32 v{t}, v{x}', f'v_permlane32_swap_b32 v{x}, v{t}', f'{op} v{x}, v{x}, v{t}']

def softmax(S, M, L):
    o = [f'v_max3_f32 v{M}, v{S}, v{S+1}, v{S+2}', f'v_max3_f32 v{M}, v{M}, v{S+3}, v{S+4}']
    o += red('v_max_f32', M, TA)
    o.append(f'v_mul_f32 v{M}, s{sSc}, v{M}')
    for u in range(5): o.append(f'v_fma_f32 v{S+u}, v{S+u}, s{sSc}, -v{M}')
    for u in range(5): o.append(f'v_exp_f32 v{S+u}, v{S+u}')
    o += [f'v_add_f32 v{L}, v{S}, v{S+1}', f'v_cvt_pk_bf16_f32 v{S}, v{S}, v{S}', f'v_add_f32 v{TB}, v{S+2}, v{S+3}',
          f'v_cvt_pk_bf16_f32 v{S+1}, v{S+1}, v{S+1}', f'v_add_f32 v{L}, v{L}, v{S+4}', f'v_cvt_pk_bf16_f32 v{S+2}, v{S+2}, v{S+2}',
          f'v_add_f32 v{L}, v{L}, v{TB}', f'v_cvt_pk_bf16_f32 v{S+3}, v{S+3}, v{S+3}', f'v_cvt_pk_bf16_f32 v{S+4}, v{S+4}, v{S+4}']
    return o, red('v_add_f32', L, TA)

def ands(S, t, buf):
    return [f'v_and_b32_dpp v{buf + r}, v{S + (t >> 2)}, v{MASK + r} row_newbcast:{4 * (t & 3)} {DPPALL}' for r in range(4)]
def pv_m(s, t, j, acc, buf, p1):
    a = vr(acc + 4 * j, 4)
    return Use(f'{MF} {a}, {vr(buf, 4)}, %s, {"0" if t == 0 else a}', s, 38 + 2 * t + j, p1)

def pv_units(s, S, acc, bufs, t0, t1, p1):
    units = [ands(S, t0, bufs[t0 % 2])]
    for t in range(t0, t1):
        nx = ands(S, t + 1, bufs[(t + 1) % 2]) if t + 1 < t1 else []
        units.append(nx[:2] + [pv_m(s, t, 0, acc, bufs[t % 2], p1)] + nx[2:] + [pv_m(s, t, 1, acc, bufs[t % 2], p1)])
    return units

def publish(acc, M, L, so, tag):
    o = [f'v_cvt_pk_bf16_f32 v{acc + k}, v{acc + 2 * k}, v{acc + 2 * k + 1}' for k in range(4)]
    o += [f'v_mov_b32_dpp v{acc}, v{M} quad_perm:[0,1,2,3] row_mask:0xc bank_mask:0xf',
          f'v_mov_b32_dpp v{acc + 1}, v{L} quad_perm:[0,1,2,3] row_mask:0xc bank_mask:0xf',
          I(f'buffer_store_dwordx4 {vr(acc, 4)}, v{vO}, {srd(WS)}, s{so} offen sc1', tag=tag)]
    return o

def qloads(so):
    return [f'buffer_load_dwordx4 {vr(Q, 4)}, v{vQ}, {srd(WS)}, s{so} offen sc1',
            f'buffer_load_dwordx4 {vr(Q + 4, 4)}, v{vQ}, {srd(WS)}, s{so} offen offset:512 sc1']
def qcheck(lab):
    return [f'v_max_u32 v{TA}, v{Q}, v{Q + 4}', f'v_cmp_eq_u32 vcc, -1, v{TA}', f's_cbranch_vccnz {lab}_s', f'{lab}_r:']

def build_phase(s, cfg):
    D = cfg['D']; T1 = cfg['T1']; TQ1 = cfg['TQ1']; TQ2 = cfg['TQ2']
    o = 1 - s
    work = {t: [] for t in range(-1, 76)}
    flat = lambda us: [x for u in us for x in u]
    nrest = cfg.get('nrest', (D + 1) // 2 + 0)
    tr0 = 19 - nrest
    qk2 = qk_units(s, S2, False)
    sm2, lr2 = softmax(S2, M2, L2)
    pv2 = pv_units(s, S2, U, [Q, Q + 4], 0, 19, False)
    per = cfg.get('qk2per', 4)
    seq = []
    slot = -1
    for i in range(0, 22, per):
        work[slot] += flat(qk2[i:i + per]); slot += 1
    qk2_end = slot
    for t in range(tr0, 19):
        sl = max(39 + 2 * t + D - 76, 0) - 1
        sl = max(sl, -1)
        it = ands(S1, t, BX) + [pv_m(o, t, 0, ACC1, BX, True), pv_m(o, t, 1, ACC1, BX, True)]
        if t == 18:
            it += publish(ACC1, M1, L1, sO1, 'pub1') + stamp_items(cfg)
        work[sl] += it
    slot = max(qk2_end, 0)
    work[slot] += sm2; slot += 1
    pvper = cfg.get('pv2per', 4)
    first = True
    for i in range(0, len(pv2), pvper):
        it = flat(pv2[i:i + pvper])
        work[slot] += it
        if first:
            work[slot] += lr2; first = False
        slot += 1
    work[slot - 1] += publish(U, M2, L2, sO2, 'pub2') + stamp_items(cfg) + [f's_cmp_ge_u32 s{sPh}, 4', f's_cbranch_scc1 L_tail{s}']
    assert slot - 1 + D < T1 + 1, (slot, T1)
    work[T1 - 1] += [f'L_p2_{s}:', Mark('p2')]
    if s == 0 and not cfg.get('noclear'):
        work[T1 + D + 2] += [f's_cmp_lg_u32 s{sPh}, 0', 's_cbranch_scc1 L_a_noat', 's_barrier',
                     f's_cmp_lg_u32 s{sW}, 0', 's_cbranch_scc1 L_a_noat',
                     f'v_mov_b32 v{TA}, 1', f'v_lshlrev_b32 v{TB}, 20, v{vL}',
                     I(f'buffer_atomic_add v{TA}, v{TB}, {srd(DBG)}, s{sCnt} offen sc1', nocount=True), 'L_a_noat:']
    work[TQ1 - D - 2] += [f'v_mov_b32 v{TD}, 0', f'buffer_load_dword v{TC}, v{TD}, {srd(DBG)}, 0 offen offset:{CNT_C} sc1']
    work[TQ1 - 1] += [f'v_cmp_gt_u32 vcc, 32, v{TC}', f's_cbranch_vccnz L_cc{s}_s', f'L_cc{s}_r:']
    work[TQ1] += qloads(sQ1)
    slot = TQ1 + D
    work[slot] += qcheck(f'L_q1{s}') + stamp_items(cfg)
    assert slot >= 37 + D - 5
    qk1 = qk_units(s, S1, True)
    per = cfg.get('qk1per', 4)
    for i in range(0, 22, per):
        slot = max(slot, min(2 * (i + per - 1) + 1, 37) + D)
        work[slot] += flat(qk1[i:i + per]); slot += 1
    sm1, lr1 = softmax(S1, M1, L1)
    work[slot] += sm1 + lr1; slot += 1
    pv1 = pv_units(s, S1, ACC1, [U, U + 4], 0, tr0, True)
    work[slot - 1] += pv1[0]
    cnt = 0; pvper = cfg.get('pv1per', 4)
    for t in range(tr0):
        need = 39 + 2 * t + D
        if need > slot: slot = need; cnt = 0
        if cnt == pvper: slot += 1; cnt = 0
        assert slot <= 75, (t, slot)
        work[slot] += pv1[t + 1]; cnt += 1
    assert slot > TQ2 or True
    work[TQ2] = qloads(sQ2) + [Mark('q2')] + work[TQ2]
    upd = [f's_add_u32 s{sPh}, s{sPh}, 1',
           f's_lshl_b32 s{sBase}, s{sPh}, 25', f's_cmp_ge_u32 s{sPh}, 4', f's_cselect_b32 s{sBase}, 0x80000000, s{sBase}',
           f's_add_u32 s{sQ1}, s{sQ1}, {QBJ}', f's_add_u32 s{sQ2}, s{sQ1}, {3 * QBJ}',
           f's_mul_i32 s{sO1}, s{sPh}, {OBJ}', f's_add_u32 s{sO2}, s{sO1}, {OB0 + 2 * OBJ}', f's_add_u32 s{sO1}, s{sO1}, {OB0 - OBJ}',
           f's_cmp_ge_u32 s{sPh}, 5', f's_cselect_b32 s{sO1}, {OOB}, s{sO1}',
           f's_cmp_lt_u32 s{sPh}, 2', f's_cselect_b32 s{sO2}, {OOB}, s{sO2}']
    work[75] += qcheck(f'L_q2{s}') + stamp_items(cfg) + upd
    items = [f'L_ph{s}:'] + work[-1]
    for k in range(76):
        pk = (s, k - D) if k >= D else (o, k - D + 76)
        items.append(lambda p, pk=pk: p.wait(('ld',) + pk))
        items.append(Mark(('landed',) + pk))
        items += load_items(s, k, cfg)
        items += work[k]
    return items

def resolve(items, cfg):
    n = len(items)
    uses = [i for i, x in enumerate(items) if isinstance(x, Use) and SM[(x.s, x.k)][0] == 'l']
    assert len(uses) % 2 == 0
    marks = {}
    for i, x in enumerate(items):
        if isinstance(x, Mark): marks.setdefault(x.name, []).append(i)
    ins = {}
    pre = {0: [], 1: []}
    phase_start = [i for i, x in enumerate(items) if isinstance(x, str) and x.startswith('L_ph')]
    for ui, pos in enumerate(uses):
        x = items[pos]
        buf = STG + 4 * (ui % 2)
        x.reg = vr(buf, 4)
        back = (pos - uses[ui - 2]) % n
        cand = [back, min((pos - m) % n for m in marks['p2'])]
        if x.p1:
            lm = marks[('landed', x.s, x.k)][0]
            d = (pos - lm) % n
            if d > n // 2: d = 1
            cand.append(d)
        else:
            cand.append(min((pos - m) % n for m in marks['q2']))
        d = min(cand)
        at = (pos - d) % n
        rdi = f'ds_read_b128 {x.reg}, v{vL} offset:{SM[(x.s, x.k)][1] * 1024}'
        ins.setdefault(at, []).append(I(rdi, deps=[('ld', x.s, x.k)]))
        if not x.p1 and (pos - phase_start[x.s]) % n < d: pre[x.s].append(rdi)
    out = []
    for i, x in enumerate(items):
        if isinstance(x, Use):
            kind, idx = SM[(x.s, x.k)]
            out.append(x.fmt % (x.reg if kind == 'l' else treg(idx)))
        else:
            out.append(x)
        out += ins.get(i, [])
    return out, pre

def gen_attn(p, cfg):
    e = p.e
    D = cfg['D']; T1 = cfg['T1']
    items, pre = resolve(build_phase(0, cfg) + build_phase(1, cfg), cfg)
    def run(q):
        snaps = {}
        for x in items:
            if isinstance(x, Mark):
                if x.name == 'p2' and 'p2' not in snaps: snaps['p2'] = q.snapshot()
                continue
            q.e(x)
        q.flush(); q.e('s_branch L_ph0')
        snaps['end'] = q.snapshot()
        return snaps
    q = Prog(); s1 = run(q)
    q = Prog(); q.restore(s1['end']); s2 = run(q)
    assert s2['end'] == s1['end']
    p2v, p2l = s2['p2']
    assert all(t is not None and t[0] == 'ld' and t[1] == 0 for t, _ in p2v), p2v
    e('L_attn:')
    e('s_load_dwordx4 s[4:7], s[0:1], 8')
    e('s_load_dwordx4 s[44:47], s[0:1], 80')
    lane, i_, g, t0, t1 = 40, 41, 42, 43, 44
    e(f'v_lshrrev_b32 v{t0}, 6, v0'); e(f'v_and_b32 v{lane}, 63, v0')
    e(f'v_readfirstlane_b32 s{sW}, v{t0}')
    e(f'v_and_b32 v{i_}, 15, v0'); e(f'v_lshrrev_b32 v{g}, 4, v{lane}')
    e('s_sub_u32 s48, s2, 32')
    e('s_mul_i32 s49, s48, 4682'); e('s_lshr_b32 s49, s49, 16')
    e('s_mul_i32 s50, s49, 14'); e('s_sub_u32 s50, s48, s50')
    e('s_lshl_b32 s50, s50, 2'); e(f's_add_u32 s50, s50, s{sW}')
    e('s_mul_i32 s51, s50, 1198373'); e('s_add_u32 s52, s51, 1198373'); e('s_lshr_b32 s51, s51, 16'); e('s_lshr_b32 s52, s52, 16')
    e('s_lshl_b32 s53, s49, 21'); e('s_lshl_b32 s54, s51, 11'); e('s_add_u32 s53, s53, s54')
    e(f'v_lshrrev_b32 v{t0}, 2, v{i_}'); e(f'v_lshlrev_b32 v{t0}, 9, v{t0}'); e(f'v_lshl_add_u32 v{t0}, v{g}, 6, v{t0}')
    e(f'v_and_b32 v{t1}, 3, v{i_}'); e(f'v_lshl_add_u32 v{t0}, v{t1}, 4, v{t0}'); e(f'v_add_u32 v{vK}, s53, v{t0}')
    e(f's_mul_i32 s{sLds}, s{sW}, 40960'); e(f's_mov_b32 s{sBase}, 0')
    e(f's_mov_b32 s{KS+2}, 0x8000000'); e(f's_mov_b32 s{KS+3}, 0x20000'); e(f's_mov_b32 s{VS+2}, 0x8000000'); e(f's_mov_b32 s{VS+3}, 0x20000')
    e(f's_mov_b32 s{WS+2}, {WS_SIZE}'); e(f's_mov_b32 s{WS+3}, 0x20000'); e(f's_mov_b32 s{DBG+2}, 256'); e(f's_mov_b32 s{DBG+3}, 0x20000')
    p.wait_all()
    e(f's_mov_b32 s{KS}, s4'); e(f's_mov_b32 s{KS+1}, s5')
    nfirst = T1 - len(p2v)
    assert nfirst >= 0
    for k in range(nfirst): e(load_items(0, k, cfg))
    e(f's_mov_b32 s{VS}, s6'); e(f's_mov_b32 s{VS+1}, s7'); e(f's_mov_b32 s{WS}, s46'); e(f's_mov_b32 s{WS+1}, s47')
    e(f's_mov_b32 s{DBG}, s44'); e(f's_mov_b32 s{DBG+1}, s45')
    if cfg.get('stamps'):
        e(f's_mov_b32 s{sStamp}, 0'); e(f'v_mov_b32 v{vSTAMP}, 0'); e(stamp_items(cfg))
    e(f'v_lshlrev_b32 v{t0}, 9, v{g}'); e(f'v_lshl_add_u32 v{t0}, v{i_}, 4, v{t0}'); e(f'v_add_u32 v{vV}, s53, v{t0}')
    e(f'v_lshlrev_b32 v{vL}, 4, v{lane}'); e(f'v_add_u32 v{vL}, s{sLds}, v{vL}')
    e('s_lshl_b32 s54, s49, 10'); e(f'v_lshlrev_b32 v{t0}, 7, v{g}'); e(f'v_lshl_add_u32 v{t0}, v{t1}, 4, v{t0}'); e(f'v_add_u32 v{vQ}, s54, v{t0}')
    e('s_mul_i32 s54, s49, 56'); e('s_add_u32 s54, s54, s50'); e('s_mul_i32 s54, s54, 640')
    e(f'v_lshl_add_u32 v{t0}, v{i_}, 1, v{g}'); e(f'v_lshlrev_b32 v{t0}, 4, v{t0}')
    e(f'v_mov_b32 v{t1}, 512'); e(f'v_cmp_gt_u32 vcc, 32, v{lane}'); e(f'v_cndmask_b32 v{t0}, v{t1}, v{t0}, vcc')
    e(f'v_add_u32 v{t0}, s54, v{t0}'); e(f'v_mov_b32 v{t1}, 0x80000000'); e(f'v_cmp_gt_u32 vcc, 33, v{lane}'); e(f'v_cndmask_b32 v{vO}, v{t1}, v{t0}, vcc')
    if not cfg.get('noclear'):
        for k in range(4): e(f'v_mov_b32 v{BX + k}, -1')
        for j in range(8):
            e(f's_mov_b32 s55, {OB0 + j * OBJ}'); e(f'buffer_store_dwordx4 {vr(BX, 4)}, v{vO}, {srd(WS)}, s55 offen sc1')
    for k in range(nfirst, T1): e(load_items(0, k, cfg))
    e(f'v_and_b32 v{t0}, 1, v{i_}'); e(f'v_mov_b32 v{t1}, 0xffff'); e(f'v_lshlrev_b32 v{t0}, 4, v{t0}'); e(f'v_lshlrev_b32 v{t1}, v{t0}, v{t1}')
    e(f'v_bfe_u32 v{t0}, v{i_}, 1, 2')
    for r in range(4):
        e(f'v_cmp_eq_u32 vcc, {r}, v{t0}'); e(f'v_cndmask_b32 v{MASK + r}, 0, v{t1}, vcc')
    e('s_sub_u32 s52, s52, s51'); e('s_cmp_eq_u32 s52, 19')
    e(f's_cselect_b32 s{sLast}, 4096, {OOB}'); e(f's_cselect_b32 s{sBias}, 0, 0xff800000')
    e(f's_mov_b32 s{sQ1}, {QB0}'); e(f's_mov_b32 s{sQ2}, {OOB}'); e(f's_mov_b32 s{sO1}, {OOB}'); e(f's_mov_b32 s{sO2}, {OOB}')
    e(f's_mov_b32 s{sPh}, 0'); e(f's_mov_b32 s{sBud}, {cfg.get("budget", 100000)}'); e(f's_mov_b32 s{sSc}, {f32hex(math.log2(math.e) / 16)}')
    e('s_and_b32 s54, s2, 1'); e(f's_mul_i32 s54, s54, {CNT_A1 - CNT_A0}'); e(f's_add_u32 s{sCnt}, s54, {CNT_A0}')
    p.wait_vm(len(p2v))
    p.flush(); e('s_branch L_p2_0')
    p.restore(s1['end'])
    run(p)
    for s in range(2):
        for lab, so in ((f'L_q1{s}', sQ1), (f'L_q2{s}', sQ2)):
            p.reset_queues()
            e(f'{lab}_s:')
            e(f's_sub_u32 s{sBud}, s{sBud}, 1'); e('s_cbranch_scc1 L_end')
            e(qloads(so)); p.wait_all(force=True)
            e(f'v_max_u32 v{TA}, v{Q}, v{Q + 4}'); e(f'v_cmp_eq_u32 vcc, -1, v{TA}'); e(f's_cbranch_vccnz {lab}_s')
            e(f's_branch {lab}_r')
        p.reset_queues()
        e(f'L_cc{s}_s:')
        e(f's_sub_u32 s{sBud}, s{sBud}, 1'); e('s_cbranch_scc1 L_end')
        e(f'buffer_load_dword v{TC}, v{TD}, {srd(DBG)}, 0 offen offset:{CNT_C} sc1'); p.wait_all(force=True)
        e(f'v_cmp_gt_u32 vcc, 32, v{TC}'); e(f's_cbranch_vccnz L_cc{s}_s')
        e(f's_branch L_cc{s}_r')
    p.reset_queues()
    e('L_tail0:')
    e('s_nop 7')
    e(pre[1])
    e('s_branch L_q20_s')
    e('L_tail1:')
    if cfg.get('stamps'):
        e(f's_lshl_b32 s4, s2, 2'); e(f's_add_u32 s4, s4, s{sW}'); e('s_lshl_b32 s4, s4, 8'); e(f's_add_u32 s4, s4, {STAMP0}')
        e(f'v_subrev_u32 v{TA}, s{sLds}, v{vL}'); e(f'v_lshrrev_b32 v{TA}, 2, v{TA}')
        e(f'buffer_store_dword v{vSTAMP}, v{TA}, {srd(WS)}, s4 offen')
    e('s_branch L_end')
```

```python
from asmlib import *
from common import *

vOBd, vOBs, vXg, vXp, vYp, vQp, vOut, vLw, vLrx, vLro, vLrs, vLwh, vLrh, vRes, vChk = range(1, 16)
MASK = 16; OMASK = 20; R = 24; ST = 28; WW = 30; DEN = 31
G = 32; ACC = 64; AB = 80; T = 88
P = 92
vSTAMP = 95
NEGM = 88; RS = 89; T2 = 90; T3 = 91; WF = 94
vDq, vDo, vDg, vDd, vTrP, vTrS = 72, 73, 74, 75, 76, 77
RING = 36
AUX = 4 * RING * 1024
OBUF, XB_L, ONES, HZ, RES = 0, 1024, 2048, 3072, 4096
HBUF = HZ + 384
MIRR = 8192
WQ, WO, WS, DBG, WG, WU, WD, XS, OUT = 8, 12, 16, 20, 24, 28, 32, 36, 40
sC, sW = 2, 3
sOB, sXB, sYB, sQB, sRes, sOut, sL2, sDes, sK, sTab, sBud, sT, sRing, sT2, sB = range(44, 59)
sM7 = 60
sStamp = 62; sSt = 88

def srd(b): return f's[{b}:{b+3}]'
def frag(f): return vr(4 * f, 4, 'a') if f < 64 else vr(96 + 4 * (f - 64), 4)
def fragh(f, half): return vr(4 * f + 2 * half, 2, 'a') if f < 64 else vr(96 + 4 * (f - 64) + 2 * half, 2)
F_WQ = lambda s, t: 2 * t + s
F_WO = lambda pi, s, t: 28 + 4 * t + 2 * pi + s
F_WG = lambda t: 60 + 2 * t
F_WU = lambda t: 61 + 2 * t
F_WD = lambda k, s, t: 88 + 8 * t + 2 * k + s
MF = 'v_mfma_f32_16x16x32_bf16'
DPPALL = 'row_mask:0xf bank_mask:0xf'

def stamp(p, cfg):
    if not cfg.get('stamps'): return
    p.e(f's_memrealtime s[{sSt}:{sSt+1}]'); p.wait_all(vm=False)
    p.e(f's_mov_b32 m0, s{sStamp}')
    p.e(f'v_writelane_b32 v{vSTAMP}, s{sSt}, m0')
    p.e(f's_add_u32 s{sStamp}, s{sStamp}, 1')

def dma_list():
    L = []
    for t in range(14):
        for half in range(2):
            L.append((WQ, vDq, (32 * t + 4 * half) * 8192, [(fragh(F_WQ(s, t), half), 8 * s, vTrP) for s in range(2)]))
    for t in range(8):
        for half in range(2):
            for pi in range(2):
                L.append((WO, vDo, (128 * half + 16 * t) * 896 + pi * 64, [(fragh(F_WO(pi, s, t), half), 8 * s, vTrP) for s in range(2)]))
    for t in range(14):
        L.append((WG, vDg, 32 * t * 3584, [(fragh(F_WG(t), half), 512 * half, vTrS) for half in range(2)]))
        L.append((WU, vDg, 32 * t * 3584, [(fragh(F_WU(t), half), 512 * half, vTrS) for half in range(2)]))
    for t in range(2):
        for half in range(2):
            for k in range(4):
                L.append((WD, vDd, (32 * t + 4 * half) * 896 + k * 64, [(fragh(F_WD(k, s, t), half), 8 * s, vTrP) for s in range(2)]))
    return L

def stats_side(src):
    a, b, s1, s2 = AB + 4, AB + 5, T2, T3
    o = []
    for k in range(4):
        o.append(f'v_lshlrev_b32 v{a}, 16, v{src+k}')
        o.append(f'v_and_b32 v{b}, 0xffff0000, v{src+k}')
        if k == 0:
            o.append(f'v_mul_f32 v{s2}, v{a}, v{a}')
            o.append(f'v_add_f32 v{s1}, v{a}, v{b}')
        else:
            o.append(f'v_fmac_f32 v{s2}, v{a}, v{a}')
            o.append(f'v_add_f32 v{s1}, v{s1}, v{a}')
            o.append(f'v_add_f32 v{s1}, v{s1}, v{b}')
        o.append(f'v_fmac_f32 v{s2}, v{b}, v{b}')
    o += [f'v_permlane16_swap_b32 v{s1}, v{s2}', f'v_add_f32 v{s1}, v{s1}, v{s2}',
          f'v_mov_b32 v{s2}, v{s1}', f'v_permlane32_swap_b32 v{s1}, v{s2}', f'v_add_f32 v{s1}, v{s1}, v{s2}',
          f'v_add_f32_dpp v{s1}, v{s1}, v{s1} quad_perm:[1,0,3,2] {DPPALL}',
          f'v_add_f32_dpp v{s1}, v{s1}, v{s1} quad_perm:[2,3,0,1] {DPPALL}',
          f'v_add_f32_dpp v{s1}, v{s1}, v{s1} row_half_mirror {DPPALL}',
          f'v_add_f32_dpp v{s1}, v{s1}, v{s1} row_mirror {DPPALL}',
          f'v_mul_f32 v{s1}, {f32hex(1.0/448)}, v{s1}',
          f'v_mov_b32 v{s2}, v{s1}', f'v_permlane16_swap_b32 v{s1}, v{s2}',
          f'v_fma_f32 v{s2}, -v{s1}, v{s1}, v{s2}',
          f'v_cvt_pk_bf16_f32 v{a}, v{s2}, v{s1}',
          f'v_lshlrev_b32 v{s2}, 16, v{a}',
          f'v_add_f32 v{s2}, {f32hex(1e-5)}, v{s2}',
          f'v_cvt_pk_bf16_f32 v{s2}, v{s2}, v{s2}',
          f'v_and_b32 v{s2}, 0xffff0000, v{s2}',
          f'v_sqrt_f32 v{s2}, v{s2}',
          f'v_and_b32 v{a}, 0xffff0000, v{a}',
          f'v_cvt_pk_bf16_f32 v{s2}, v{s2}, v{s2}',
          f'v_and_b32 v{s2}, 0xffff0000, v{s2}',
          f'v_rcp_f32 v{RS}, v{s2}',
          f'v_xor_b32 v{NEGM}, 0x80000000, v{a}']
    return o

def matvec14(p, mk):
    rd = lambda t: f'ds_read_b128 {vr(G + 4 * (t % 8), 4)}, v{vLrx} offset:{64 * t}'
    p.e(rd(0)); p.e(f'ds_read_b128 {vr(AB, 4)}, v{vLrs} offset:{XB_L}')
    for t in range(1, 8): p.e(rd(t))
    main = []
    for t in range(14):
        main += mk(t, vr(G + 4 * (t % 8), 4))
        if t + 8 < 14: main.append(rd(t + 8))
    return main

def retry(p, lab):
    p.e(f'v_cmp_eq_u32 vcc, -1, v{vChk}')
    p.e(f's_cbranch_vccnz {lab}_s')

def slow(p, lab):
    p.e(f'{lab}_s:')
    p.e(f's_sub_u32 s{sBud}, s{sBud}, 1')
    p.e('s_cbranch_scc1 L_end')
    p.e('s_nop 7')
    p.e(f's_branch {lab}')

def gen_chain(p, cfg):
    e = p.e
    e('L_chain:')
    e('s_load_dwordx16 s[64:79], s[0:1], 0')
    e('s_load_dwordx8 s[80:87], s[0:1], 64')
    lane, n, g, t0, t1, t2 = 32, 33, 34, 35, 36, 37
    OOBV = 38
    e(f'v_and_b32 v{lane}, 63, v0'); e(f'v_lshrrev_b32 v{t0}, 6, v0')
    e(f'v_readfirstlane_b32 s{sW}, v{t0}')
    e(f'v_and_b32 v{n}, 15, v0'); e(f'v_lshrrev_b32 v{g}, 4, v{lane}')
    e(f'v_mov_b32 v{OOBV}, 0x80000000')
    e(f's_lshr_b32 s4, s{sC}, 1')
    e(f's_and_b32 s5, s{sC}, 1'); e(f's_lshl_b32 s5, s5, 2'); e(f's_add_u32 s5, s5, s{sW}')
    e(f's_mul_i32 s{sRing}, s{sW}, {RING * 1024}')
    if cfg.get('stamps'):
        e(f's_mov_b32 s{sStamp}, 0'); e(f'v_mov_b32 v{vSTAMP}, 0')
    rho, cc = t0, t1
    e(f'v_lshrrev_b32 v{rho}, 2, v{lane}'); e(f'v_and_b32 v{cc}, 3, v{lane}'); e(f'v_lshlrev_b32 v{cc}, 4, v{cc}')
    e(f'v_and_b32 v{t2}, 3, v{rho}'); e(f'v_lshl_add_u32 v{t2}, v{g}, 3, v{t2}')
    e(f's_lshl_b32 s6, s{sC}, 8'); e(f's_lshl_b32 s7, s{sW}, 6'); e('s_add_u32 s6, s6, s7')
    e(f'v_lshl_add_u32 v{vDq}, v{t2}, 13, v{cc}'); e(f'v_add_u32 v{vDq}, s6, v{vDq}')
    e(f's_mul_i32 s6, s{sC}, {64 * 896}'); e(f's_lshl_b32 s7, s{sW}, 8'); e('s_add_u32 s6, s6, s7')
    e(f'v_mul_u32_u24 v{vDd}, 896, v{t2}'); e(f'v_add3_u32 v{vDd}, v{vDd}, v{cc}, s6')
    e(f's_mul_i32 s6, s4, {256 * 896}'); e('s_lshl_b32 s7, s5, 7'); e('s_add_u32 s6, s6, s7')
    e('s_cmp_eq_u32 s5, 7'); e('s_cselect_b32 s6, 0x80000000, s6')
    e(f'v_mul_u32_u24 v{vDo}, 896, v{rho}'); e(f'v_add3_u32 v{vDo}, v{vDo}, v{cc}, s6')
    e(f'v_bfe_u32 v{t0}, v{lane}, 3, 2'); e(f'v_bfe_u32 v{t1}, v{lane}, 1, 2'); e(f'v_lshl_add_u32 v{t0}, v{t0}, 3, v{t1}')
    e(f'v_lshrrev_b32 v{t1}, 5, v{lane}'); e(f'v_lshl_add_u32 v{t0}, v{t1}, 2, v{t0}')
    e(f'v_mul_u32_u24 v{vDg}, 3584, v{t0}'); e(f'v_and_b32 v{t1}, 1, v{lane}'); e(f'v_lshl_add_u32 v{vDg}, v{t1}, 4, v{vDg}')
    e(f's_lshl_b32 s6, s{sC}, 7'); e(f's_lshl_b32 s7, s{sW}, 5'); e('s_add_u32 s6, s6, s7'); e(f'v_add_u32 v{vDg}, s6, v{vDg}')
    e(f'v_lshlrev_b32 v{vTrP}, 4, v{lane}'); e(f'v_add_u32 v{vTrP}, s{sRing}, v{vTrP}')
    e(f'v_lshlrev_b32 v{vTrS}, 3, v{lane}'); e(f'v_add_u32 v{vTrS}, s{sRing}, v{vTrS}')
    p.wait_all()
    def mk(b, ptr, size):
        e(f's_mov_b32 s{b}, s{ptr}'); e(f's_mov_b32 s{b+1}, s{ptr+1}'); e(f's_mov_b32 s{b+2}, {size}'); e(f's_mov_b32 s{b+3}, 0x20000')
    mk(WQ, 70, 448 * 8192)
    dl = dma_list()
    pol = cfg.get('wpol', '')
    def dma(f):
        s, vo, so, _ = dl[f]
        e(f's_add_u32 m0, s{sRing}, {(f % RING) * 1024}')
        e(f's_mov_b32 s{sT}, {so}')
        e(f'buffer_load_dwordx4 v{vo}, {srd(s)}, s{sT} offen {pol} lds', tag=('dma', f))
    def trs(f):
        for d, off, a in dl[f][3]:
            e(f'ds_read_b64_tr_b16 {d}, v{a} offset:{(f % RING) * 1024 + off}', deps=[('dma', f)], tag=('tr', f))
    stamp(p, cfg)
    for f in range(28): dma(f)
    mk(WO, 72, 4096 * 896); mk(WS, 86, WS_SIZE); mk(DBG, 84, 256); mk(WG, 76, 448 * 3584); mk(WU, 78, 448 * 3584)
    mk(WD, 80, 1792 * 896); mk(XS, 64, 3584); mk(OUT, 82, 3584)
    e(f's_lshl_b32 s6, s{sW}, 8')
    e(f'v_lshlrev_b32 v{t0}, 4, v{n}'); e(f'v_add_u32 v{t0}, s6, v{t0}')
    e(f'v_and_b32 v{t1}, 1, v{g}'); e(f'v_lshl_add_u32 v{t1}, v{t1}, 3, v{t0}')
    e(f'v_cmp_gt_u32 vcc, 896, v{t0}'); e(f'v_cmp_gt_u32 s[6:7], 2, v{g}')
    e(f'v_lshl_add_u32 v{t2}, v{g}, 10, v{t0}')
    e(f'v_cndmask_b32 v{vXg}, v{OOBV}, v{t2}, vcc')
    e(f'v_cndmask_b32 v{vOut}, v{OOBV}, v{t1}, vcc'); e(f'v_cndmask_b32 v{vOut}, v{OOBV}, v{vOut}, s[6:7]')
    for b in range(4):
        e(f'buffer_load_dwordx2 {vr(40 + 2 * b, 2)}, v{vOut}, {srd(XS)}, 0 offen offset:{b * 896}')
    e(f'v_add_u32 v{vLw}, {AUX}, v{t1}'); e(f'v_add_u32 v{t2}, {AUX + MIRR}, v{t1}')
    e(f'v_cndmask_b32 v{vLw}, v{t2}, v{vLw}, s[6:7]')
    e(f'v_lshrrev_b32 v{t0}, 2, v{n}'); e(f'v_lshlrev_b32 v{t1}, 4, v{g}'); e(f'v_lshl_add_u32 v{t1}, v{t0}, 6, v{t1}')
    e(f'v_and_b32 v{t2}, 3, v{n}'); e(f'v_cmp_eq_u32 vcc, 0, v{t2}'); e(f'v_cndmask_b32 v{t1}, v{OOBV}, v{t1}, vcc')
    e(f's_lshl_b32 s6, s{sW}, 8'); e(f'v_add_u32 v{t2}, s6, v{t1}')
    e(f'v_cmp_gt_u32 vcc, 896, v{t2}'); e(f's_lshl_b32 s6, s{sC}, 10'); e(f'v_add_u32 v{t2}, s6, v{t2}')
    e(f'v_cndmask_b32 v{vYp}, v{OOBV}, v{t2}, vcc')
    e(f's_lshl_b32 s6, s4, 10'); e('s_lshl_b32 s7, s5, 7'); e('s_add_u32 s6, s6, s7')
    e(f'v_add_u32 v{t2}, s6, v{t1}')
    e(f'v_cmp_gt_u32 vcc, 64, v{t1}'); e(f'v_cndmask_b32 v{vQp}, v{OOBV}, v{t2}, vcc')
    e('s_cmp_eq_u32 s5, 7'); e('s_cselect_b32 s7, 0, 128')
    e(f'v_cmp_gt_u32 vcc, s7, v{t1}'); e(f'v_cndmask_b32 v{vXp}, v{OOBV}, v{t2}, vcc')
    if not cfg.get('noclear'):
        for k in range(4): e(f'v_mov_b32 v{48 + k}, -1')
        for j in range(8):
            e(f's_mov_b32 s{sT}, {QB0 + j * QBJ}'); e(f'buffer_store_dwordx4 v[48:51], v{vQp}, {srd(WS)}, s{sT} offen sc1')
            e(f's_mov_b32 s{sT}, {XB0 + j * XBJ}'); e(f'buffer_store_dwordx4 v[48:51], v{vXp}, {srd(WS)}, s{sT} offen sc1')
            e(f's_mov_b32 s{sT}, {YB0 + j * YBJ}'); e(f'buffer_store_dwordx4 v[48:51], v{vYp}, {srd(WS)}, s{sT} offen sc1', tag='clr')
    e(f's_lshr_b32 s6, s{sW}, 1'); e('s_mul_i32 s6, s6, 28'); e('s_mul_i32 s7, s4, 56'); e(f's_add_u32 s{sT}, s6, s7')
    e(f's_sub_u32 s6, 28, s6'); e('s_add_u32 s7, s6, s7')
    e(f'v_add_u32 v{t0}, s{sT}, v{g}'); e(f'v_mul_u32_u24 v{t0}, 640, v{t0}'); e(f'v_lshl_add_u32 v{t0}, v{n}, 4, v{t0}')
    e(f's_and_b32 s6, s{sW}, 1'); e('s_lshl_b32 s6, s6, 8'); e(f'v_add_u32 v{vOBd}, s6, v{t0}')
    e(f'v_and_b32 v{t0}, 7, v{n}'); e(f'v_min_u32 v{t0}, 6, v{t0}'); e(f'v_lshl_add_u32 v{t0}, v{t0}, 2, v{g}')
    e(f'v_mov_b32 v{t1}, s{sT}'); e(f'v_mov_b32 v{t2}, s7'); e(f'v_cmp_gt_u32 vcc, 8, v{n}'); e(f'v_cndmask_b32 v{t1}, v{t2}, v{t1}, vcc')
    e(f'v_add_u32 v{t0}, v{t0}, v{t1}'); e(f'v_mul_u32_u24 v{t0}, 640, v{t0}'); e(f'v_add_u32 v{vOBs}, 512, v{t0}')
    e(f'v_lshlrev_b32 v{t0}, 4, v{g}'); e(f'v_and_b32 v{t1}, 1, v{n}')
    e(f'v_mul_u32_u24 v{t2}, {ONES + 128 - XB_L}, v{t1}'); e(f'v_add_u32 v{vLrx}, {AUX + XB_L}, v{t0}'); e(f'v_add_u32 v{vLrx}, v{vLrx}, v{t2}')
    e(f'v_lshl_add_u32 v{vLro}, v{t1}, 9, v{t0}'); e(f'v_add_u32 v{vLro}, {AUX + OBUF}, v{vLro}')
    e(f'v_lshlrev_b32 v{vLrs}, 4, v{lane}'); e(f'v_add_u32 v{vLrs}, {AUX}, v{vLrs}')
    e(f's_lshl_b32 s6, s{sW}, 5'); e(f's_add_u32 s6, s6, {AUX + HBUF}'); e(f'v_lshlrev_b32 v{vLwh}, 1, v{n}'); e(f'v_add_u32 v{vLwh}, s6, v{vLwh}')
    e(f'v_lshrrev_b32 v{t1}, 2, v{n}'); e(f'v_lshlrev_b32 v{t1}, 7, v{t1}'); e(f'v_add_u32 v{vLrh}, {AUX + HBUF}, v{t0}'); e(f'v_sub_u32 v{vLrh}, v{vLrh}, v{t1}')
    e(f'v_and_b32 v{t0}, 1, v{n}'); e(f'v_mov_b32 v{t1}, 0xffff'); e(f'v_lshlrev_b32 v{t0}, 4, v{t0}'); e(f'v_lshlrev_b32 v{t1}, v{t0}, v{t1}')
    e(f'v_bfe_u32 v{t0}, v{n}, 1, 2')
    for r in range(4):
        e(f'v_cmp_eq_u32 vcc, {r}, v{t0}'); e(f'v_cndmask_b32 v{MASK + r}, 0, v{t1}, vcc'); e(f'v_and_b32 v{OMASK + r}, 0x3f803f80, v{MASK + r}')
    e(f's_mov_b32 s{sM7}, 0x7f7f7f7f'); e(f's_mov_b32 s{sM7+1}, 0x7f7f7f7f')
    e(f's_mov_b32 s{sBud}, {cfg.get("budget", 100000)}'); e(f's_mov_b32 s{sTab}, 0x76352410'); e(f's_mov_b32 s{sK}, 0')
    for k in range(4): e(f'v_mov_b32 v{52 + k}, 0x3f803f80'); e(f'v_mov_b32 v{56 + k}, 0')
    e(f'ds_write_b128 v{vLrs}, v[52:55] offset:{ONES}'); e(f'ds_write_b128 v{vLrs}, v[56:59] offset:{HZ}')
    for f in range(28, RING): dma(f)
    nxt = RING
    for f0 in range(0, 28, 4):
        for f in range(f0, f0 + 4): trs(f)
        if f0 > 0:
            p.wait(('tr', f0 - 1))
            for f in range(nxt, nxt + 4): dma(f)
            nxt += 4
    for b in range(4):
        e(f'ds_write_b64 v{vLw}, {vr(40 + 2 * b, 2)} offset:{RES + b * 1024}')
    p.wait('clr')
    p.wait_all(vm=False)
    for f in range(nxt, nxt + 4): dma(f)
    nxt += 4
    e('s_barrier')
    if not cfg.get('noclear'):
        e(f's_cmp_lg_u32 s{sW}, 0'); e('s_cbranch_scc1 L_c_noat')
        e(f'v_mov_b32 v{t0}, 1'); e(f'v_cmp_eq_u32 vcc, 0, v{lane}'); e(f'v_cndmask_b32 v{t1}, v{OOBV}, v{lane}, vcc')
        e(f'buffer_atomic_add v{t0}, v{t1}, {srd(DBG)}, 0 offen offset:{CNT_C} sc1', nocount=True)
        e('L_c_noat:')
    stamp(p, cfg)
    snap_stage = p.snapshot()
    e(f's_mov_b32 s{sB}, 0')
    p.flush(); e('s_branch L_initjob')
    e('L_stage2:')
    p.restore(snap_stage)
    done = 28
    while done < 104:
        if done == 60:
            e(f's_cmp_lt_u32 s{sC}, 28'); e('s_cbranch_scc1 L_st_go')
            e('s_waitcnt vmcnt(0) lgkmcnt(0)'); e('s_branch L_st_done'); e('L_st_go:')
        for f in range(done, done + 4): trs(f)
        if done > 28:
            p.wait(('tr', done - 1))
            for f in range(nxt, min(nxt + 4, 104)): dma(f)
            nxt += 4
        done += 4
    p.wait_all()
    e('L_st_done:')
    stamp(p, cfg)
    e(f's_mov_b32 s{sB}, 1')
    e('s_branch L_initjob')
    e('L_next:')
    p.reset_queues()
    e(f's_add_u32 s{sK}, s{sK}, 1')
    e(f's_cmp_ge_u32 s{sK}, 5'); e('s_cbranch_scc1 L_real')
    e(f's_cmp_eq_u32 s{sK}, 1'); e('s_cbranch_scc1 L_stage2')
    e(f's_mov_b32 s{sB}, s{sK}')
    e(f's_cmp_lt_u32 s{sK}, 4'); e('s_cbranch_scc1 L_initjob')
    for s in (sOB, sXB, sYB, sQB): e(f's_mov_b32 s{s}, 0x40000000')
    e(f's_mov_b32 s{sRes}, {OBUF}'); e(f's_mov_b32 s{sL2}, 0'); e(f's_mov_b32 s{sDes}, 0')
    if cfg.get('nodummy'): e('s_branch L_next')
    else: e('s_branch L_job')
    e('L_initjob:')
    e(f's_lshl_b32 s{sRes}, s{sB}, 10'); e(f's_add_u32 s{sRes}, s{sRes}, {RES}')
    e(f's_mul_i32 s{sQB}, s{sB}, {QBJ}')
    if QB0: e(f's_add_u32 s{sQB}, s{sQB}, {QB0}')
    e(f'v_add_u32 v{vRes}, s{sRes}, v{vLw}')
    e(f'ds_read_b64 {vr(P, 2)}, v{vRes}')
    e('s_barrier')
    p.wait_all(vm=False)
    e('s_branch L_x2')
    e('L_real:')
    e(f's_cmp_ge_u32 s{sK}, 13'); e('s_cbranch_scc1 L_cend')
    e(f's_cmp_gt_u32 s{sK}, 5'); e('s_cbranch_scc1 L_dec')
    e('L_cnt:')
    e(f'v_mov_b32 v{T}, 0')
    e(f'buffer_load_dword v{G}, v{T}, {srd(DBG)}, 0 offen offset:{CNT_C} sc1')
    e(f'buffer_load_dword v{G+1}, v{T}, {srd(DBG)}, 0 offen offset:{CNT_A0} sc1')
    e(f'buffer_load_dword v{G+2}, v{T}, {srd(DBG)}, 0 offen offset:{CNT_A1} sc1')
    e(f'v_add3_u32 v{G}, v{G}, v{G+1}, v{G+2}')
    e(f'v_cmp_ne_u32 vcc, 0x100, v{G}')
    e('s_cbranch_vccnz L_cnt_s')
    e('L_dec:')
    e(f's_and_b32 s{sT}, s{sTab}, 15'); e(f's_lshr_b32 s{sTab}, s{sTab}, 4')
    e(f's_and_b32 s{sB}, s{sT}, 3'); e(f's_lshr_b32 s{sL2}, s{sT}, 2')
    e(f's_mul_i32 s{sOB}, s{sT}, {OBJ}'); e(f's_add_u32 s{sOB}, s{sOB}, {OB0}')
    e(f's_mul_i32 s{sXB}, s{sT}, {XBJ}'); e(f's_add_u32 s{sXB}, s{sXB}, {XB0}')
    e(f's_mul_i32 s{sYB}, s{sT}, {YBJ}'); e(f's_add_u32 s{sYB}, s{sYB}, {YB0}')
    e(f's_mul_i32 s{sQB}, s{sB}, {QBJ}'); e(f's_add_u32 s{sQB}, s{sQB}, {QB0 + 4 * QBJ}')
    e(f's_lshl_b32 s{sRes}, s{sB}, 10'); e(f's_add_u32 s{sRes}, s{sRes}, {RES}')
    e(f's_mul_i32 s{sOut}, s{sB}, 896')
    e(f's_add_u32 s{sT}, s{sB}, 28'); e(f's_cmp_lg_u32 s{sT}, s{sC}'); e(f's_cselect_b32 s{sDes}, s{sL2}, 0')
    e('L_job:')
    e(f'v_add_u32 v{vRes}, s{sRes}, v{vLw}')
    e(f'ds_read_b64 {vr(P, 2)}, v{vRes}')
    def unpack():
        return [f'v_lshlrev_b32 v{R}, 16, v{P}', f'v_and_b32 v{R+1}, 0xffff0000, v{P}',
                f'v_lshlrev_b32 v{R+2}, 16, v{P+1}', f'v_and_b32 v{R+3}, 0xffff0000, v{P+1}']
    e(unpack())
    stamp(p, cfg)
    e('L_s1:')
    e(f'buffer_load_dwordx2 {vr(ST, 2)}, v{vOBs}, {srd(WS)}, s{sOB} offen sc1')
    for L in range(7):
        if L == 0: so = sOB
        elif L % 2 == 0:
            e(f's_add_u32 s{sT}, s{sOB}, {2560 * L}'); so = sT
        e(f'buffer_load_dwordx4 {vr(G + 4 * L, 4)}, v{vOBd}, {srd(WS)}, s{so} offen offset:{2560 * (L % 2)} sc1')
    m, t = T, T + 1
    e(f'v_max_f32_dpp v{m}, v{ST}, v{ST} quad_perm:[1,0,3,2] {DPPALL}')
    e(f'v_max_f32_dpp v{m}, v{m}, v{m} quad_perm:[2,3,0,1] {DPPALL}')
    e(f'v_max_f32_dpp v{m}, v{m}, v{m} row_half_mirror {DPPALL}')
    e(f'v_max_f32_dpp v{m}, v{m}, v{m} row_mirror {DPPALL}')
    e(f'v_mov_b32 v{t}, v{m}'); e(f'v_permlane16_swap_b32 v{m}, v{t}'); e(f'v_max_f32 v{m}, v{m}, v{t}')
    e(f'v_mov_b32 v{t}, v{m}'); e(f'v_permlane32_swap_b32 v{m}, v{t}'); e(f'v_max_f32 v{m}, v{m}, v{t}')
    e(f'v_sub_f32 v{WF}, v{ST}, v{m}'); e(f'v_exp_f32 v{WF}, v{WF}')
    e(f'v_cvt_pk_bf16_f32 v{WW}, v{WF}, v{WF}')
    ands = lambda L: [f'v_and_b32_dpp v{AB + 4 * (L % 2) + r}, v{WW}, v{MASK + r} row_newbcast:{L} {DPPALL}' for r in range(4)]
    e(ands(0))
    for L in range(7):
        nx = ands(L + 1) if L < 6 else [f'v_max3_u32 v{vChk}, v{ST}, v{G}, v{G+4}', f'v_max3_u32 v{vChk}, v{vChk}, v{G+8}, v{G+12}',
                                        f'v_max3_u32 v{vChk}, v{vChk}, v{G+16}, v{G+20}', f'v_max_u32 v{vChk}, v{vChk}, v{G+24}']
        e(nx[:2])
        e(f'{MF} {vr(ACC, 4)}, {vr(AB + 4 * (L % 2), 4)}, {vr(G + 4 * L, 4)}, {"0" if L == 0 else vr(ACC, 4)}')
        e(nx[2:])
    retry(p, 'L_s1')
    e(f'v_mul_f32 v{DEN}, v{WF}, v{ST+1}'); e(f'v_cndmask_b32 v{DEN}, 0, v{DEN}, s[{sM7}:{sM7+1}]')
    e(f'v_cvt_pk_bf16_f32 v{P}, v{ACC}, v{ACC+1}'); e(f'v_cvt_pk_bf16_f32 v{P+1}, v{ACC+2}, v{ACC+3}')
    e(f'ds_write_b64 v{vLw}, {vr(P, 2)} offset:{OBUF}')
    p.wait_all(vm=False); e('s_barrier')
    stamp(p, cfg)
    for tt in range(8): e(f'ds_read_b128 {vr(G + 4 * tt, 4)}, v{vLro} offset:{64 * tt}')
    acc = lambda pi, s: ACC + 4 * (2 * s + pi)
    mf = lambda pi, s, tt: f'{MF} {vr(acc(pi, s), 4)}, {frag(F_WO(pi, s, tt))}, {vr(G + 4 * tt, 4)}, {"0" if tt == 0 else vr(acc(pi, s), 4)}'
    add = lambda pi, s: [f'v_add_f32_dpp v{AB + 4 * s + r}, v{acc(pi, s) + r}, v{acc(pi, s) + r} quad_perm:[1,0,3,2] row_mask:0xf bank_mask:{"0xf" if pi == 0 else "0x2"}' for r in range(4)]
    fin = lambda s: [f'v_mul_f32 v{AB + 4 * s + r}, v{DEN}, v{AB + 4 * s + r}' for r in range(4)] + \
                    [f'v_cvt_pk_bf16_f32 v{AB + 2 * s}, v{AB + 4 * s}, v{AB + 4 * s + 1}', f'v_cvt_pk_bf16_f32 v{AB + 2 * s + 1}, v{AB + 4 * s + 2}, v{AB + 4 * s + 3}']
    d = DEN
    den = [f'v_add_f32_dpp v{d}, v{d}, v{d} quad_perm:[1,0,3,2] {DPPALL}', f'v_add_f32_dpp v{d}, v{d}, v{d} quad_perm:[2,3,0,1] {DPPALL}',
           f'v_add_f32_dpp v{d}, v{d}, v{d} row_half_mirror {DPPALL}', f'v_add_f32_dpp v{d}, v{d}, v{d} row_mirror {DPPALL}',
           f'v_mov_b32 v{t}, v{d}', f'v_permlane16_swap_b32 v{d}, v{t}', f'v_add_f32 v{d}, v{d}, v{t}',
           f'v_mov_b32 v{t}, v{d}', f'v_permlane32_swap_b32 v{d}, v{t}', f'v_add_f32 v{d}, v{d}, v{t}', f'v_rcp_f32 v{d}, v{d}']
    e(weave([mf(pi, 0, tt) for tt in range(8) for pi in range(2)], den, per=1))
    e(weave([mf(0, 1, tt) for tt in range(8)], add(0, 0) + add(1, 0), per=2, start=4))
    e(weave([mf(1, 1, tt) for tt in range(8)], fin(0) + add(0, 1), per=2, start=1))
    e(add(1, 1)); e(fin(1))
    e(f'buffer_store_dwordx4 {vr(AB, 4)}, v{vXp}, {srd(WS)}, s{sXB} offen sc1')
    stamp(p, cfg)
    def gsum(lab, base, nl):
        e(f'{lab}:')
        for L in range(nl):
            so = base
            if L: e(f's_add_u32 s{sT}, s{base}, {4096 * L}'); so = sT
            e(f'buffer_load_dwordx4 {vr(G + 4 * L, 4)}, v{vXg}, {srd(WS)}, s{so} offen sc1')
        for L in range(nl):
            e(f'{MF} {vr(ACC, 4)}, {vr(OMASK, 4)}, {vr(G + 4 * L, 4)}, {vr(R, 4) if L == 0 else vr(ACC, 4)}')
            if L == 1: e(f'v_max_u32 v{vChk}, v{G}, v{G+4}')
            elif L > 1: e(f'v_max_u32 v{vChk}, v{vChk}, v{G + 4 * L}')
        retry(p, lab)
        e(f'v_cvt_pk_bf16_f32 v{P}, v{ACC}, v{ACC+1}'); e(f'v_cvt_pk_bf16_f32 v{P+1}, v{ACC+2}, v{ACC+3}')
    gsum('L_xs', sXB, 4)
    e(f'ds_write_b64 v{vLw}, {vr(P, 2)} offset:{XB_L}')
    e(unpack())
    e(f's_cmp_ge_u32 s{sC}, 28')
    p.wait_all(vm=False); e('s_barrier')
    e('s_cbranch_scc1 L_noffn')
    stamp(p, cfg)
    main = matvec14(p, lambda tt, x: [f'{MF} {vr(ACC, 4)}, {x}, {frag(F_WG(tt))}, {"0" if tt == 0 else vr(ACC, 4)}',
                                      f'{MF} {vr(ACC + 4, 4)}, {x}, {frag(F_WU(tt))}, {"0" if tt == 0 else vr(ACC + 4, 4)}'])
    e(weave(main, stats_side(AB) + [f'v_mul_f32 v{RS}, v{RS}, v{RS}'], per=2))
    e(f'v_fmac_f32 v{ACC}, v{NEGM}, v{ACC+1}'); e(f'v_fmac_f32 v{ACC+4}, v{NEGM}, v{ACC+5}')
    e(f'v_max_f32 v{ACC}, 0, v{ACC}'); e(f'v_mul_f32 v{ACC+4}, v{RS}, v{ACC+4}'); e(f'v_mul_f32 v{ACC}, v{ACC}, v{ACC+4}')
    e(f'v_cvt_pk_bf16_f32 v{ACC}, v{ACC}, v{ACC}')
    e(f'ds_write_b16 v{vLwh}, v{ACC}')
    p.wait_all(vm=False); e('s_barrier')
    for tt in range(2):
        for k in range(4): e(f'ds_read_b128 {vr(G + 4 * (4 * tt + k), 4)}, v{vLrh} offset:{128 * k + 64 * tt}')
    for tt in range(2):
        for k in range(4):
            for s in range(2):
                first = tt == 0 and k == 0
                e(f'{MF} {vr(ACC + 4 * s, 4)}, {frag(F_WD(k, s, tt))}, {vr(G + 4 * (4 * tt + k), 4)}, {"0" if first else vr(ACC + 4 * s, 4)}')
    e(f's_cmp_lg_u32 s{sL2}, 0')
    for k in range(4): e(f'v_cvt_pk_bf16_f32 v{AB + k}, v{ACC + 2 * k}, v{ACC + 2 * k + 1}')
    e(f'buffer_store_dwordx4 {vr(AB, 4)}, v{vYp}, {srd(WS)}, s{sYB} offen sc1')
    e('s_cbranch_scc1 L_next')
    stamp(p, cfg)
    gsum('L_ys', sYB, 7)
    e(f's_cmp_lg_u32 s{sL2}, 0'); e('s_cbranch_scc1 L_out')
    e('L_x2:')
    e(f'ds_write_b64 v{vLw}, {vr(P, 2)} offset:{XB_L}')
    e(f'ds_write_b64 v{vRes}, {vr(P, 2)}')
    p.wait_all(vm=False); e('s_barrier')
    stamp(p, cfg)
    main = matvec14(p, lambda tt, x: [f'{MF} {vr(ACC + 4 * s, 4)}, {frag(F_WQ(s, tt))}, {x}, {"0" if tt == 0 else vr(ACC + 4 * s, 4)}' for s in range(2)])
    e(weave(main, stats_side(AB), per=2))
    for k in range(8): e(f'v_fmac_f32_dpp v{ACC + k}, v{ACC + k}, v{NEGM} quad_perm:[1,1,3,3] {DPPALL}')
    for k in range(8): e(f'v_mul_f32 v{ACC + k}, v{RS}, v{ACC + k}')
    for k in range(4): e(f'v_cvt_pk_bf16_f32 v{AB + k}, v{ACC + 2 * k}, v{ACC + 2 * k + 1}')
    e(f'buffer_store_dwordx4 {vr(AB, 4)}, v{vQp}, {srd(WS)}, s{sQB} offen sc1')
    stamp(p, cfg)
    p.flush(); e('s_branch L_next')
    e('L_noffn:')
    e(f's_cmp_lg_u32 s{sDes}, 0'); e('s_cbranch_scc1 L_next')
    e('s_branch L_ys')
    e('L_out:')
    e(f'buffer_store_dwordx2 {vr(P, 2)}, v{vOut}, {srd(OUT)}, s{sOut} offen')
    stamp(p, cfg)
    e('s_branch L_next')
    for lab in ('L_s1', 'L_xs', 'L_ys', 'L_cnt'): slow(p, lab)
    e('L_cend:')
    if cfg.get('stamps'):
        e(f's_lshl_b32 s4, s{sC}, 2'); e(f's_add_u32 s4, s4, s{sW}'); e('s_lshl_b32 s4, s4, 8'); e(f's_add_u32 s4, s4, {STAMP0}')
        e(f'v_and_b32 v1, 63, v0'); e('v_lshlrev_b32 v1, 2, v1')
        e(f'buffer_store_dword v{vSTAMP}, v1, {srd(WS)}, s4 offen')
    e('s_branch L_end')
```

```python
import struct
KN = "interleave_layers__mha_block_cached__glu_gated_reglu__decode"
QB0, QBJ = 0, 16384
XB0, XBJ = 0x20000, 16384
YB0, YBJ = 0x40000, 32768
OBH = 9216
OB0, OBJ = 0x80000, 16 * 9216
QBL0 = 0x400000
STAMP0 = 0x600000
WS_SIZE = 0x800000
CNT_C, CNT_A0, CNT_A1 = 0, 64, 128
def f32hex(x): return '0x%08x' % struct.unpack('<I', struct.pack('<f', x))[0]
```

```python
import sys, os, json
sys.path.insert(0, os.path.dirname(os.path.abspath(__file__)))
from asmlib import *
from common import *
import chain, attn

DEF = dict(D=6, T1=40, TQ1=44, TQ2=69)

def generate(cfg):
    c = dict(DEF); c.update(cfg)
    ref = open('cdna_kernels/' + KN + '.s.ref').read().split('\n')
    hdr = [l for l in ref if l.startswith(';') and '@launch' not in l]
    p = Prog()
    e = p.e
    e('s_cmp_ge_u32 s2, 256'); e('s_cbranch_scc1 L_end')
    e('s_cmp_lt_u32 s2, 32'); e('s_cbranch_scc1 ' + ('L_end' if c.get('mode') == 'attn' else 'L_chain'))
    if c.get('mode') == 'chain': e('s_branch L_end')
    attn.gen_attn(p, c)
    p.reset_queues(); p.hist = []
    chain.gen_chain(p, c)
    e('L_end:'); e('s_endpgm')
    o = hdr + ['; @launch grid=(256,1,1) block=(256,1,1) lds=163840',
               '.amdgcn_target "amdgcn-amd-amdhsa--gfx950"', '.text', f'.globl {KN}_kernel', '.p2align 8',
               f'.type {KN}_kernel,@function', f'{KN}_kernel:'] + p.out + [
               '.section .rodata,"a"', '.p2align 6', f'.amdhsa_kernel {KN}_kernel',
               '  .amdhsa_next_free_vgpr 512', '  .amdhsa_next_free_sgpr 102', '  .amdhsa_accum_offset 256',
               '  .amdhsa_group_segment_fixed_size 0', '  .amdhsa_kernarg_size 96', '  .amdhsa_user_sgpr_count 2',
               '  .amdhsa_user_sgpr_kernarg_segment_ptr 1', '  .amdhsa_system_sgpr_workgroup_id_x 1', '.end_amdhsa_kernel', '']
    return '\n'.join(o), p.ninstr

if __name__ == '__main__':
    out = sys.argv[1]
    cfg = {}
    for a in sys.argv[2:]:
        k, v = a.split('=')
        try: v = int(v, 0)
        except ValueError: pass
        cfg[k] = v
    s, n = generate(cfg)
    open(out, 'w').write(s)
    print(out, 'instrs', n, 'bytes', len(s))
```

```python
from asmlib import *
from common import *
import math

vK, vV, vL, vQ, vO, vSTAMP, M1, L1 = range(8)
MASK = 8; Q = 12; S1 = 20; S2 = 25; TA = 30; TB = 31
ACC1 = 32; U = 40; STG = 52; BX = 60
M2, L2, TC, TD = 48, 49, 50, 51
KS, VS, WS, DBG = 8, 12, 16, 20
sW = 3
sOff, sBase, sLast, sBias, sQ1, sQ2, sO1, sO2, sPh, sLds, sBud, sSc, sCnt = range(24, 37)
sStamp = 38; sSt = 40
MF = 'v_mfma_f32_16x16x32_bf16'
DPPALL = 'row_mask:0xf bank_mask:0xf'
OOB = 0x40000000
def srd(b): return f's[{b}:{b+3}]'

KL = [k for k in range(38) if k % 4 == 1]
VL = [38 + k for k in range(38) if k % 4 == 0]
def slot_map():
    m = {}
    r = 0
    for s in range(2):
        l = 0
        for k in VL + KL:
            m[(s, k)] = ('l', s * 20 + l); l += 1
        for k in range(76):
            if (s, k) not in m:
                m[(s, k)] = ('r', r); r += 1
    assert r == 112
    return m
SM = slot_map()
def treg(r): return vr(64 + 4 * r, 4) if r < 48 else vr(4 * (r - 48), 4, 'a')

class Use:
    def __init__(self, fmt, s, k, p1): self.fmt = fmt; self.s = s; self.k = k; self.p1 = p1
class Mark:
    def __init__(self, name): self.name = name

def stamp_items(cfg):
    if not cfg.get('stamps'): return []
    return [f's_memrealtime s[{sSt}:{sSt+1}]', lambda p: p.wait_all(vm=False), f's_mov_b32 m0, s{sStamp}',
            f'v_writelane_b32 v{vSTAMP}, s{sSt}, m0', f's_add_u32 s{sStamp}, s{sStamp}, 1']

def load_items(s, k, cfg):
    o = []
    kk = k % 38
    if k == 38 or k == 0: o.append(f's_mov_b32 s{sOff}, s{sBase}')
    elif kk == 36: o.append(f's_add_u32 s{sOff}, s{sOff}, s{sLast}')
    elif kk % 4 == 0: o.append(f's_add_u32 s{sOff}, s{sOff}, 4096')
    off = ((kk >> 1) & 1) * 2048 + (kk & 1) * 256
    vo, sr = (vK, KS) if k < 38 else (vV, VS)
    kind, idx = SM[(s, k)]
    if kind == 'l':
        o.append(f's_add_u32 m0, s{sLds}, {idx * 1024 - off}')
        o.append(I(f'buffer_load_dwordx4 v{vo}, {srd(sr)}, s{sOff} offen offset:{off} nt lds', tag=('ld', s, k)))
    else:
        o.append(I(f'buffer_load_dwordx4 {treg(idx)}, v{vo}, {srd(sr)}, s{sOff} offen offset:{off} nt', tag=('ld', s, k)))
    return o

def qk_units(s, S, p1):
    units = []
    acc = lambda t: U + 4 * (t % 3)
    for t in range(22):
        u = []
        if t < 19:
            a = vr(acc(t), 4)
            u.append(Use(f'{MF} {a}, %s, {vr(Q, 4)}, 0', s, 2 * t, p1))
            u.append(Use(f'{MF} {a}, %s, {vr(Q + 4, 4)}, {a}', s, 2 * t + 1, p1))
        if t == 2: u.append(f'v_mov_b32 v{S + 4}, 0xff800000')
        c = t - 3
        if c >= 0:
            u.append(f'v_add_f32_dpp v{S + (c >> 2)}, v{TB}, v{TA} quad_perm:[2,2,2,2] row_mask:0xf bank_mask:{hex(1 << (c & 3))}')
        c = t - 2
        if 0 <= c < 19:
            a = acc(c)
            u.append(f'v_add_f32_dpp v{TA}, v{a + 1}, v{a} quad_perm:[1,1,1,1] {DPPALL}')
            u.append(f'v_add_f32_dpp v{TB}, v{a + 3}, v{a + 2} quad_perm:[3,3,3,3] {DPPALL}')
            if c == 18: u.append(f'v_add_f32 v{TA}, s{sBias}, v{TA}')
        units.append(u)
    return units

def red(op, x, t):
    return [f'{op}_dpp v{x}, v{x}, v{x} row_ror:4 {DPPALL}', f'{op}_dpp v{x}, v{x}, v{x} row_ror:8 {DPPALL}',
            f'v_mov_b32 v{t}, v{x}', f'v_permlane16_swap_b32 v{x}, v{t}', f'{op} v{x}, v{x}, v{t}',
            f'v_mov_b32 v{t}, v{x}', f'v_permlane32_swap_b32 v{x}, v{t}', f'{op} v{x}, v{x}, v{t}']

def softmax(S, M, L):
    o = [f'v_max3_f32 v{M}, v{S}, v{S+1}, v{S+2}', f'v_max3_f32 v{M}, v{M}, v{S+3}, v{S+4}']
    o += red('v_max_f32', M, TA)
    o.append(f'v_mul_f32 v{M}, s{sSc}, v{M}')
    for u in range(5): o.append(f'v_fma_f32 v{S+u}, v{S+u}, s{sSc}, -v{M}')
    for u in range(5): o.append(f'v_exp_f32 v{S+u}, v{S+u}')
    o += [f'v_add_f32 v{L}, v{S}, v{S+1}', f'v_cvt_pk_bf16_f32 v{S}, v{S}, v{S}', f'v_add_f32 v{TB}, v{S+2}, v{S+3}',
          f'v_cvt_pk_bf16_f32 v{S+1}, v{S+1}, v{S+1}', f'v_add_f32 v{L}, v{L}, v{S+4}', f'v_cvt_pk_bf16_f32 v{S+2}, v{S+2}, v{S+2}',
          f'v_add_f32 v{L}, v{L}, v{TB}', f'v_cvt_pk_bf16_f32 v{S+3}, v{S+3}, v{S+3}', f'v_cvt_pk_bf16_f32 v{S+4}, v{S+4}, v{S+4}']
    return o, red('v_add_f32', L, TA)

def ands(S, t, buf):
    return [f'v_and_b32_dpp v{buf + r}, v{S + (t >> 2)}, v{MASK + r} row_newbcast:{4 * (t & 3)} {DPPALL}' for r in range(4)]
def pv_m(s, t, j, acc, buf, p1):
    a = vr(acc + 4 * j, 4)
    return Use(f'{MF} {a}, {vr(buf, 4)}, %s, {"0" if t == 0 else a}', s, 38 + 2 * t + j, p1)

def pv_units(s, S, acc, bufs, t0, t1, p1):
    units = [ands(S, t0, bufs[t0 % 2])]
    for t in range(t0, t1):
        nx = ands(S, t + 1, bufs[(t + 1) % 2]) if t + 1 < t1 else []
        units.append(nx[:2] + [pv_m(s, t, 0, acc, bufs[t % 2], p1)] + nx[2:] + [pv_m(s, t, 1, acc, bufs[t % 2], p1)])
    return units

def publish(acc, M, L, so, slot, A, pw, lab):
    t0, t1, ad, tl = BX, BX + 1, A + 4, A + 4
    o = [f'v_cvt_pk_bf16_f32 v{acc + k}, v{acc + 2 * k}, v{acc + 2 * k + 1}' for k in range(4)]
    o += [f'v_mov_b32_dpp v{acc}, v{M} quad_perm:[0,0,0,0] row_mask:0xc bank_mask:0xf',
          f'v_mov_b32_dpp v{acc + 1}, v{L} quad_perm:[0,0,0,0] row_mask:0xc bank_mask:0xf',
          I(f'ds_write_b128 v{vL}, {vr(acc, 4)} offset:{slot * 1024}', tag='cw'),
          f'v_subrev_u32 v{ad}, s{sLds}, v{vL}', f'v_lshrrev_b32 v{t0}, 8, v{ad}', f'v_mul_u32_u24 v{t0}, {40960 - 256}, v{t0}', f'v_add_u32 v{ad}, v{ad}, v{t0}',
          f's_cmp_lg_u32 s{sW}, {pw}',
          lambda p: p.wait_all(vm=False), 's_barrier', f's_cbranch_scc1 {lab}',
          f'ds_read_b64 {vr(M, 2)}, v{ad} offset:{slot * 1024 + 512}',
          f'ds_read_b128 {vr(acc, 4)}, v{ad} offset:{slot * 1024}', f'ds_read_b128 {vr(acc + 4, 4)}, v{ad} offset:{slot * 1024 + 256}',
          f'v_mov_b32 v{t0}, v{M}', f'v_mov_b32 v{t1}, v{M}', f'v_permlane16_swap_b32 v{t0}, v{t1}', f'v_max_f32 v{t0}, v{t0}, v{t1}',
          f'v_mov_b32 v{t1}, v{t0}', f'v_permlane32_swap_b32 v{t0}, v{t1}', f'v_max_f32 v{tl}, v{t0}, v{t1}',
          f'v_sub_f32 v{M}, v{M}, v{tl}', f'v_exp_f32 v{M}, v{M}', f'v_cvt_pk_bf16_f32 v{t0}, v{M}, v{M}']
    o += [f'v_and_b32 v{A + r}, v{t0}, v{MASK + r}' for r in range(4)]
    o += [f'v_mul_f32 v{L}, v{L}, v{M}', f'v_mov_b32 v{M}, v{L}',
          f'{MF} {vr(BX, 4)}, {vr(A, 4)}, {vr(acc, 4)}, 0', f'{MF} {vr(acc, 4)}, {vr(A, 4)}, {vr(acc + 4, 4)}, 0',
          f'v_permlane16_swap_b32 v{L}, v{M}', f'v_add_f32 v{L}, v{L}, v{M}', f'v_mov_b32 v{M}, v{L}',
          f'v_permlane32_swap_b32 v{L}, v{M}', f'v_add_f32 v{L}, v{L}, v{M}',
          f'v_cvt_pk_bf16_f32 v{BX}, v{BX}, v{BX + 1}', f'v_cvt_pk_bf16_f32 v{BX + 1}, v{BX + 2}, v{BX + 3}',
          f'v_cvt_pk_bf16_f32 v{BX + 2}, v{acc}, v{acc + 1}', f'v_cvt_pk_bf16_f32 v{BX + 3}, v{acc + 2}, v{acc + 3}',
          f'v_mov_b32_dpp v{BX}, v{tl} quad_perm:[0,1,2,3] row_mask:0xc bank_mask:0xf',
          f'v_mov_b32_dpp v{BX + 1}, v{L} quad_perm:[0,1,2,3] row_mask:0xc bank_mask:0xf',
          I(f'buffer_store_dwordx4 {vr(BX, 4)}, v{vO}, {srd(WS)}, s{so} offen sc1', nocount=True),
          lambda p: p.flush(), f'{lab}:']
    return o

def qloads(so):
    return [f'buffer_load_dwordx4 {vr(Q, 4)}, v{vQ}, {srd(WS)}, s{so} offen sc1',
            f'buffer_load_dwordx4 {vr(Q + 4, 4)}, v{vQ}, {srd(WS)}, s{so} offen offset:512 sc1']
def qcheck(lab):
    return [f'v_max_u32 v{TA}, v{Q}, v{Q + 4}', f'v_cmp_eq_u32 vcc, -1, v{TA}', f's_cbranch_vccnz {lab}_s', f'{lab}_r:']

def build_phase(s, cfg):
    D = cfg['D']; T1 = cfg['T1']; TQ1 = cfg['TQ1']; TQ2 = cfg['TQ2']
    o = 1 - s
    work = {t: [] for t in range(-1, 76)}
    flat = lambda us: [x for u in us for x in u]
    nrest = cfg.get('nrest', (D + 1) // 2 + 0)
    tr0 = 19 - nrest
    qk2 = qk_units(s, S2, False)
    sm2, lr2 = softmax(S2, M2, L2)
    pv2 = pv_units(s, S2, U, [Q, Q + 4], 0, 19, False)
    per = cfg.get('qk2per', 4)
    pub_slots = []
    slot = -1
    for i in range(0, 22, per):
        work[slot] += flat(qk2[i:i + per]); slot += 1
    qk2_end = slot
    for t in range(tr0, 19):
        sl = max(39 + 2 * t + D - 76, 0) - 1
        sl = max(sl, -1)
        if t == 18: sl = max(sl, 18 // per - 1)
        it = ands(S1, t, BX) + [pv_m(o, t, 0, ACC1, BX, True), pv_m(o, t, 1, ACC1, BX, True)]
        if t == 18:
            if s == 1: it += [f's_cmp_eq_u32 s{sPh}, 5', 's_cbranch_scc1 L_skip1']
            it += publish(ACC1, M1, L1, sO1, SM[(s, 37)][1], S1, 0, f'L_np1{s}') + stamp_items(cfg)
            pub_slots.append(sl)
        work[sl] += it
    slot = max(qk2_end, 0)
    work[slot] += sm2; slot += 1
    pvper = cfg.get('pv2per', 4)
    first = True
    for i in range(0, len(pv2), pvper):
        it = flat(pv2[i:i + pvper])
        work[slot] += it
        if first:
            work[slot] += lr2; first = False
        slot += 1
    pub_slots.append(slot - 1)
    work[slot - 1] += publish(U, M2, L2, sO2, SM[(s, 33)][1], Q, 1, f'L_np2{s}') + stamp_items(cfg) + [f's_cmp_ge_u32 s{sPh}, 4', f's_cbranch_scc1 L_tail{s}']
    assert slot - 1 + D + cfg.get('X', 0) < T1, (slot, T1)
    work[T1 - 1] += [f'L_p2_{s}:', Mark('p2')]
    assert TQ1 >= T1
    work[cfg.get('TB3', 24)] += ['s_barrier']
    assert cfg.get('TB3', 24) < T1
    work[TQ1] += qloads(sQ1)
    slot = TQ1 + D
    work[slot] += qcheck(f'L_q1{s}') + stamp_items(cfg)
    assert slot >= 37 + D - 5
    qk1 = qk_units(s, S1, True)
    per = cfg.get('qk1per', 4)
    for i in range(0, 22, per):
        slot = max(slot, min(2 * (i + per - 1) + 1, 37) + D)
        work[slot] += flat(qk1[i:i + per]); slot += 1
    sm1, lr1 = softmax(S1, M1, L1)
    work[slot] += sm1 + lr1; slot += 1
    pv1 = pv_units(s, S1, ACC1, [U, U + 4], 0, tr0, True)
    work[slot - 1] += pv1[0]
    cnt = 0; pvper = cfg.get('pv1per', 4)
    for t in range(tr0):
        need = 39 + 2 * t + D
        if need > slot: slot = need; cnt = 0
        if cnt == pvper: slot += 1; cnt = 0
        assert slot <= 75, (t, slot)
        work[slot] += pv1[t + 1]; cnt += 1
    assert slot > TQ2 or True
    work[TQ2] = qloads(sQ2) + [Mark('q2')] + work[TQ2]
    upd = [f's_add_u32 s{sPh}, s{sPh}, 1',
           f's_lshl_b32 s{sBase}, s{sPh}, 25', f's_cmp_ge_u32 s{sPh}, 4', f's_cselect_b32 s{sBase}, 0x80000000, s{sBase}',
           f's_add_u32 s{sQ1}, s{sQ1}, {QBJ}', f's_add_u32 s{sQ2}, s{sQ1}, {3 * QBJ}',
           f's_mul_i32 s{sO1}, s{sPh}, {OBJ}', f's_add_u32 s{sO2}, s{sO1}, {OB0 + 2 * OBJ}', f's_add_u32 s{sO1}, s{sO1}, {OB0 - OBJ}',
           f's_cmp_ge_u32 s{sPh}, 5', f's_cselect_b32 s{sO1}, {OOB}, s{sO1}',
           f's_cmp_lt_u32 s{sPh}, 2', f's_cselect_b32 s{sO2}, {OOB}, s{sO2}']
    work[75] += qcheck(f'L_q2{s}') + stamp_items(cfg) + upd
    items = [f'L_ph{s}:'] + work[-1]
    pend = []
    for k in range(76):
        pk = (s, k - D) if k >= D else (o, k - D + 76)
        X = cfg.get('X', 0)
        skip = any(ps + 1 + D <= k <= ps + D + X for ps in pub_slots)
        pend.append(Mark(('landed',) + pk))
        if not skip:
            items.append(lambda p, pk=pk: p.wait(('ld',) + pk))
            items += pend; pend = []
        items += load_items(s, k, cfg)
        items += work[k]
    return items

def resolve(items, cfg):
    n = len(items)
    uses = [i for i, x in enumerate(items) if isinstance(x, Use) and SM[(x.s, x.k)][0] == 'l']
    assert len(uses) % 2 == 0
    marks = {}
    for i, x in enumerate(items):
        if isinstance(x, Mark): marks.setdefault(x.name, []).append(i)
    ins = {}
    pre = {0: [], 1: []}
    phase_start = [i for i, x in enumerate(items) if isinstance(x, str) and x.startswith('L_ph')]
    for ui, pos in enumerate(uses):
        x = items[pos]
        buf = STG + 4 * (ui % 2)
        x.reg = vr(buf, 4)
        back = (pos - uses[ui - 2]) % n
        cand = [back, min((pos - m) % n for m in marks['p2'])]
        if x.p1:
            lm = marks[('landed', x.s, x.k)][0]
            d = (pos - lm) % n
            if d > n // 2: d = 1
            cand.append(d)
        else:
            cand.append(min((pos - m) % n for m in marks['q2']))
        d = min(cand)
        at = (pos - d) % n
        rdi = f'ds_read_b128 {x.reg}, v{vL} offset:{SM[(x.s, x.k)][1] * 1024}'
        ins.setdefault(at, []).append(I(rdi, deps=[('ld', x.s, x.k)]))
        if not x.p1 and (pos - phase_start[x.s]) % n < d: pre[x.s].append(rdi)
    out = []
    for i, x in enumerate(items):
        if isinstance(x, Use):
            kind, idx = SM[(x.s, x.k)]
            out.append(x.fmt % (x.reg if kind == 'l' else treg(idx)))
        else:
            out.append(x)
        out += ins.get(i, [])
    return out, pre

def gen_attn(p, cfg):
    e = p.e
    D = cfg['D']; T1 = cfg['T1']
    items, pre = resolve(build_phase(0, cfg) + build_phase(1, cfg), cfg)
    def run(q):
        snaps = {}
        for x in items:
            if isinstance(x, Mark):
                if x.name == 'p2' and 'p2' not in snaps: snaps['p2'] = q.snapshot()
                continue
            q.e(x)
        q.flush(); q.e('s_branch L_ph0')
        snaps['end'] = q.snapshot()
        return snaps
    q = Prog(); s1 = run(q)
    q = Prog(); q.restore(s1['end']); s2 = run(q)
    assert s2['end'] == s1['end']
    p2v, p2l = s2['p2']
    assert all(t is not None and t[0] == 'ld' and t[1] == 0 for t, _ in p2v), p2v
    e('L_attn:')
    e('s_load_dwordx16 s[64:79], s[0:1], 0')
    e('s_load_dwordx8 s[80:87], s[0:1], 64')
    lane, i_, g, t0, t1 = 40, 41, 42, 43, 44
    e(f'v_lshrrev_b32 v{t0}, 6, v0'); e(f'v_and_b32 v{lane}, 63, v0')
    e(f'v_readfirstlane_b32 s{sW}, v{t0}')
    e(f'v_and_b32 v{i_}, 15, v0'); e(f'v_lshrrev_b32 v{g}, 4, v{lane}')
    e('s_sub_u32 s48, s2, 32')
    e('s_mul_i32 s49, s48, 4682'); e('s_lshr_b32 s49, s49, 16')
    e('s_mul_i32 s50, s49, 14'); e('s_sub_u32 s50, s48, s50')
    e('s_lshl_b32 s50, s50, 2'); e(f's_add_u32 s50, s50, s{sW}')
    e('s_mul_i32 s51, s50, 1198373'); e('s_add_u32 s52, s51, 1198373'); e('s_lshr_b32 s51, s51, 16'); e('s_lshr_b32 s52, s52, 16')
    e('s_lshl_b32 s53, s49, 21'); e('s_lshl_b32 s54, s51, 11'); e('s_add_u32 s53, s53, s54')
    e(f'v_lshrrev_b32 v{t0}, 2, v{i_}'); e(f'v_lshlrev_b32 v{t0}, 9, v{t0}'); e(f'v_lshl_add_u32 v{t0}, v{g}, 6, v{t0}')
    e(f'v_and_b32 v{t1}, 3, v{i_}'); e(f'v_lshl_add_u32 v{t0}, v{t1}, 4, v{t0}'); e(f'v_add_u32 v{vK}, s53, v{t0}')
    e(f's_mul_i32 s{sLds}, s{sW}, 40960'); e(f's_mov_b32 s{sBase}, 0')
    e(f's_mov_b32 s{KS+2}, 0x8000000'); e(f's_mov_b32 s{KS+3}, 0x20000'); e(f's_mov_b32 s{VS+2}, 0x8000000'); e(f's_mov_b32 s{VS+3}, 0x20000')
    e(f's_mov_b32 s{WS+2}, {WS_SIZE}'); e(f's_mov_b32 s{WS+3}, 0x20000'); e(f's_mov_b32 s{DBG+2}, 256'); e(f's_mov_b32 s{DBG+3}, 0x20000')
    PF = 56; sX, sR, sA, sB_ = 60, 61, 62, 63
    pq, pg, po, pd = 45, 46, 47, 52
    e(f's_add_u32 s{sX}, s2, {cfg.get("pfx", 0)}'); e(f's_and_b32 s{sX}, s{sX}, 7'); e(f's_lshr_b32 s{sR}, s48, 3'); e(f's_lshl_b32 s{sR}, s{sR}, 2'); e(f's_add_u32 s{sR}, s{sR}, s{sW}')
    e(f's_lshl_b32 s{sA}, s{sR}, 15'); e(f's_lshl_b32 s{sB_}, s{sX}, 8'); e(f's_add_u32 s{sA}, s{sA}, s{sB_}')
    e(f'v_lshlrev_b32 v{pq}, 13, v{g}'); e(f'v_lshl_add_u32 v{pq}, v{i_}, 4, v{pq}'); e(f'v_add_u32 v{pq}, s{sA}, v{pq}')
    e(f's_mov_b32 s{PF+3}, 0x20000')
    ppol = cfg.get('ppol', '')
    pfn = [0]
    def pf(vo, so, off):
        r = 128 + 4 * pfn[0]; pfn[0] += 1
        return f'buffer_load_dwordx4 a[{r}:{r+3}], v{vo}, {srd(PF)}, {so} offen offset:{off} {ppol}'
    def pfs(ptr, size): return [f's_mov_b32 s{PF}, s{ptr}', f's_mov_b32 s{PF+1}, s{ptr+1}', f's_mov_b32 s{PF+2}, {size}']
    PQ = [pfs(70, 448 * 8192) + [f's_movk_i32 s{sA}, 4096', pf(pq, 0, 0)], [pf(pq, 0, 2048)], [pf(pq, f's{sA}', 0)], [pf(pq, f's{sA}', 2048)]]
    PO = []
    for m in range(5):
        it = [f's_add_u32 s{sA}, s{sR}, {112 * m}', f's_lshr_b32 s{sB_}, s{sA}, 7', f's_mul_i32 s{sB_}, s{sB_}, {4 * 256 * 896}',
              f's_and_b32 s{sA}, s{sA}, 127', f's_mul_i32 s{sA}, s{sA}, 1792', f's_add_u32 s{sA}, s{sA}, s{sB_}', pf(po, f's{sA}', 0)]
        if m == 0: it = pfs(72, 4096 * 896) + it
        PO.append(it)
    PG = []
    for ptr in (76, 78):
        PG += [pfs(ptr, 448 * 3584) + [f's_movk_i32 s{sA}, 7168', pf(pg, 0, 0)], [pf(pg, f's{sA}', 0)]]
    PDn = [pfs(80, 1792 * 896) + [pf(pd, 0, 0)], [pf(pd, 0, 1024)]]
    p.wait_all()
    e(f's_mov_b32 s{KS}, s66'); e(f's_mov_b32 s{KS+1}, s67')
    PD = cfg.get('PD', D)
    seq = [load_items(0, k, cfg) for k in range(T1)]
    if not cfg.get('nopf'):
        k1, k2 = cfg.get('pfk1', 2), cfg.get('pfk2', 4)
        seq = PQ + seq[:k1] + PO + seq[k1:k2] + PG + PDn + seq[k2:]
    nfirst = min(PD, 4 + cfg.get('pfk1', 2))
    for it in seq[:nfirst]: e(it)
    e(f's_mov_b32 s{VS}, s68'); e(f's_mov_b32 s{VS+1}, s69'); e(f's_mov_b32 s{WS}, s86'); e(f's_mov_b32 s{WS+1}, s87')
    e(f's_mov_b32 s{DBG}, s84'); e(f's_mov_b32 s{DBG+1}, s85')
    e(f's_lshr_b32 s{sA}, s{sX}, 1'); e(f's_mul_i32 s{sA}, s{sA}, {256 * 896}'); e(f's_and_b32 s{sB_}, s{sX}, 1'); e(f's_lshl_b32 s{sB_}, s{sB_}, 9'); e(f's_add_u32 s{sA}, s{sA}, s{sB_}')
    e(f'v_lshrrev_b32 v{t0}, 5, v{lane}'); e(f'v_mul_u32_u24 v{po}, 896, v{t0}'); e(f'v_and_b32 v{pd}, 31, v{lane}'); e(f'v_lshl_add_u32 v{po}, v{pd}, 4, v{po}'); e(f'v_add_u32 v{po}, s{sA}, v{po}')
    e(f's_mul_i32 s{sA}, s{sR}, {4 * 3584}'); e(f's_lshl_b32 s{sB_}, s{sX}, 7'); e(f's_add_u32 s{sA}, s{sA}, s{sB_}')
    e(f'v_mul_u32_u24 v{pg}, 3584, v{t0}'); e(f'v_bfe_u32 v{t0}, v{lane}, 3, 2'); e(f'v_lshl_add_u32 v{pg}, v{t0}, 10, v{pg}')
    e(f'v_and_b32 v{t0}, 7, v{lane}'); e(f'v_lshl_add_u32 v{pg}, v{t0}, 4, v{pg}'); e(f'v_add_u32 v{pg}, s{sA}, v{pg}')
    e(f's_mul_i32 s{sA}, s{sR}, 2341'); e(f's_lshr_b32 s{sA}, s{sA}, 16')
    e(f's_mul_i32 s{sB_}, s{sA}, 28'); e(f's_sub_u32 s{sB_}, s{sR}, s{sB_}'); e(f's_lshl_b32 s{sB_}, s{sB_}, 11')
    e(f's_lshl_b32 s{sA}, s{sA}, 3'); e(f's_add_u32 s{sA}, s{sA}, s{sX}'); e(f's_mul_i32 s{sA}, s{sA}, 57344'); e(f's_add_u32 s{sA}, s{sA}, s{sB_}')
    e(f'v_lshlrev_b32 v{pd}, 4, v{lane}'); e(f'v_add_u32 v{pd}, s{sA}, v{pd}')
    if cfg.get('stamps'):
        e(f's_mov_b32 s{sStamp}, 0'); e(f'v_mov_b32 v{vSTAMP}, 0'); e(stamp_items(cfg))
    e(f'v_lshlrev_b32 v{t0}, 9, v{g}'); e(f'v_lshl_add_u32 v{t0}, v{i_}, 4, v{t0}'); e(f'v_add_u32 v{vV}, s53, v{t0}')
    e(f'v_lshlrev_b32 v{vL}, 4, v{lane}'); e(f'v_add_u32 v{vL}, s{sLds}, v{vL}')
    e('s_lshl_b32 s54, s49, 10'); e(f'v_lshlrev_b32 v{t0}, 7, v{g}'); e(f'v_lshl_add_u32 v{t0}, v{t1}, 4, v{t0}'); e(f'v_add_u32 v{vQ}, s54, v{t0}')
    e(f's_mul_i32 s54, s49, {OBH}'); e('s_lshr_b32 s55, s50, 2'); e('s_lshl_b32 s47, s55, 9'); e('s_add_u32 s47, s47, s54')
    e('s_lshl_b32 s55, s55, 7'); e('s_add_u32 s55, s55, s54'); e('s_add_u32 s55, s55, 7168')
    e(f'v_lshlrev_b32 v{t0}, 4, v{lane}'); e(f'v_add_u32 v{t0}, s47, v{t0}')
    e(f'v_mov_b32 v{t1}, s55'); e(f'v_cmp_gt_u32 vcc, 32, v{lane}'); e(f'v_cndmask_b32 v{t0}, v{t1}, v{t0}, vcc')
    e(f'v_mov_b32 v{t1}, 0x80000000'); e(f'v_cmp_gt_u32 vcc, 33, v{lane}'); e(f'v_cndmask_b32 v{vO}, v{t1}, v{t0}, vcc')
    e(f'v_and_b32 v{t0}, 1, v{i_}'); e(f'v_mov_b32 v{t1}, 0xffff'); e(f'v_lshlrev_b32 v{t0}, 4, v{t0}'); e(f'v_lshlrev_b32 v{t1}, v{t0}, v{t1}')
    e(f'v_bfe_u32 v{t0}, v{i_}, 1, 2')
    for r in range(4):
        e(f'v_cmp_eq_u32 vcc, {r}, v{t0}'); e(f'v_cndmask_b32 v{MASK + r}, 0, v{t1}, vcc')
    e('s_sub_u32 s52, s52, s51'); e('s_cmp_eq_u32 s52, 19')
    e(f's_cselect_b32 s{sLast}, 4096, {OOB}'); e(f's_cselect_b32 s{sBias}, 0, 0xff800000')
    e(f's_mov_b32 s{sQ1}, {QB0}'); e(f's_mov_b32 s{sQ2}, {OOB}'); e(f's_mov_b32 s{sO1}, {OOB}'); e(f's_mov_b32 s{sO2}, {OOB}')
    e(f's_mov_b32 s{sPh}, 0'); e(f's_mov_b32 s{sBud}, {cfg.get("budget", 100000)}'); e(f's_mov_b32 s{sSc}, {f32hex(math.log2(math.e) / 16)}')
    for k in range(nfirst, len(seq)):
        p.wait_vm(PD - 1)
        e(seq[k])
        if k == len(seq) - D - 3:
            e([f'v_mov_b32 v{TD}, 0', f'buffer_load_dword v{TC}, v{TD}, {srd(DBG)}, 0 offen offset:{CNT_C} sc1'])
    e([f'v_cmp_gt_u32 vcc, 32, v{TC}', f's_cbranch_vccnz L_cc_s', f'L_cc_r:'])
    p.wait_vm(len(p2v))
    p.flush(); e('s_branch L_p2_0')
    p.restore(s1['end'])
    run(p)
    for s in range(2):
        for lab, so in ((f'L_q1{s}', sQ1), (f'L_q2{s}', sQ2)):
            p.reset_queues()
            e(f'{lab}_s:')
            e(f's_sub_u32 s{sBud}, s{sBud}, 1'); e('s_cbranch_scc1 L_end')
            e(qloads(so)); p.wait_all(force=True)
            e(f'v_max_u32 v{TA}, v{Q}, v{Q + 4}'); e(f'v_cmp_eq_u32 vcc, -1, v{TA}'); e(f's_cbranch_vccnz {lab}_s')
            e(f's_branch {lab}_r')
    p.reset_queues()
    e(f'L_cc_s:')
    e(f's_sub_u32 s{sBud}, s{sBud}, 1'); e('s_cbranch_scc1 L_end')
    e(f'buffer_load_dword v{TC}, v{TD}, {srd(DBG)}, 0 offen offset:{CNT_C} sc1'); p.wait_all(force=True)
    e(f'v_cmp_gt_u32 vcc, 32, v{TC}'); e(f's_cbranch_vccnz L_cc_s')
    e(f's_branch L_cc_r')
    p.reset_queues()
    e('L_tail0:')
    e('s_nop 7')
    e(pre[1])
    e('s_branch L_q20_s')
    e('L_skip1:'); e('s_waitcnt lgkmcnt(0)'); e('s_nop 3'); e('s_branch L_np11')
    e('L_tail1:')
    if cfg.get('stamps'):
        e(f's_lshl_b32 s4, s2, 2'); e(f's_add_u32 s4, s4, s{sW}'); e('s_lshl_b32 s4, s4, 8'); e(f's_add_u32 s4, s4, {STAMP0}')
        e(f'v_subrev_u32 v{TA}, s{sLds}, v{vL}'); e(f'v_lshrrev_b32 v{TA}, 2, v{TA}')
        e(f'buffer_store_dword v{vSTAMP}, v{TA}, {srd(WS)}, s4 offen')
    e('s_branch L_end')
```

```python
from asmlib import *
from common import *

vOBd, vOBs, vXg, vXp, vYp, vQp, vOut, vLw, vLrx, vLro, vLrs, vLwh, vLrh, vRes, vChk = range(1, 16)
MASK = 16; OMASK = 20; R = 24; ST = 28; WW = 30; DEN = 31
G = 32; ACC = 64; AB = 80; T = 88
P = 92
vSTAMP = 95
NEGM = 88; RS = 89; T2 = 90; T3 = 91; WF = 90; vOBe = 94; OG = 72
vDq, vDo, vDg, vDd, vTq, vTo, vTg, vTa = 72, 73, 74, 75, 76, 77, 78, 79
RING = 36
AUX = 4 * RING * 1024
OBUF, XB_L, ONES, HZ, RES = 0, 1024, 2048, 3072, 4096
HBUF = HZ + 384
MIRR = 8192
WQ, WO, WS, DBG, WG, WU, WD, XS, OUT = 8, 12, 16, 20, 24, 28, 32, 36, 40
sC, sW = 2, 3
sOB, sXB, sYB, sQB, sRes, sOut, sL2, sDes, sTab, sTabH, sBud, sT, sRing, sT2, sB, sPre = range(44, 60)
sM7 = 60
sStamp = 62; sSt = 88

def srd(b): return f's[{b}:{b+3}]'
def frag(f): return vr(4 * f, 4, 'a') if f < 64 else vr(96 + 4 * (f - 64), 4)
def fragh(f, half): return vr(4 * f + 2 * half, 2, 'a') if f < 64 else vr(96 + 4 * (f - 64) + 2 * half, 2)
F_WQ = lambda s, t: 2 * t + s
F_WO = lambda pi, s, t: 28 + 4 * t + 2 * pi + s
F_WG = lambda t: 60 + 2 * t
F_WU = lambda t: 61 + 2 * t
F_WD = lambda k, s, t: 88 + 8 * t + 2 * k + s
MF = 'v_mfma_f32_16x16x32_bf16'
DPPALL = 'row_mask:0xf bank_mask:0xf'

def stamp(p, cfg):
    if not cfg.get('stamps'): return
    p.e(f's_memrealtime s[{sSt}:{sSt+1}]'); p.wait_all(vm=False)
    p.e(f's_mov_b32 m0, s{sStamp}')
    p.e(f'v_writelane_b32 v{vSTAMP}, s{sSt}, m0')
    p.e(f's_add_u32 s{sStamp}, s{sStamp}, 1')

NB = 9
def batch_list():
    L = []
    ks = [(half, gh) for half in range(2) for gh in range(2)]
    for i in range(7):
        L.append((WQ, vDq, [(64 * i + 16 * gh + 4 * half) * 8192 for half, gh in ks],
                  [(fragh(F_WQ(s, 2 * i + u), half), u * 4096 + half * 2048 + 8 * s, vTq) for u in range(2) for half in range(2) for s in range(2)]))
    for t in range(8):
        L.append((WO, vDo, [(32 * t + 16 * gh + 4 * half) * 896 for half, gh in ks],
                  [(fragh(F_WO(pi, s, t), half), half * 2048 + pi * 512 + 8 * s, vTo) for half in range(2) for pi in range(2) for s in range(2)]))
    for i in range(7):
        L.append((WG, vDg, [(64 * i + 16 * gh + 4 * half) * 3584 for half, gh in ks],
                  [(fragh((F_WU if m else F_WG)(2 * i + u), half), (2 * u + m) * 4096 + half * 2048, vTg) for u in range(2) for m in range(2) for half in range(2)]))
    for t in range(2):
        for lh in range(2):
            L.append((WD, vDd, [(32 * t + 16 * gh + 4 * half) * 896 + lh * 128 for half, gh in ks],
                      [(fragh(F_WD(2 * lh + sg, s, t), half), half * 2048 + sg * 512 + 8 * s, vTo) for half in range(2) for sg in range(2) for s in range(2)]))
    return L

def stats_side(src):
    a, b, s1, s2 = AB + 4, AB + 5, T2, T3
    o = []
    for k in range(4):
        o.append(f'v_lshlrev_b32 v{a}, 16, v{src+k}')
        o.append(f'v_and_b32 v{b}, 0xffff0000, v{src+k}')
        if k == 0:
            o.append(f'v_mul_f32 v{s2}, v{a}, v{a}')
            o.append(f'v_add_f32 v{s1}, v{a}, v{b}')
        else:
            o.append(f'v_fmac_f32 v{s2}, v{a}, v{a}')
            o.append(f'v_add_f32 v{s1}, v{s1}, v{a}')
            o.append(f'v_add_f32 v{s1}, v{s1}, v{b}')
        o.append(f'v_fmac_f32 v{s2}, v{b}, v{b}')
    o += [f'v_permlane16_swap_b32 v{s1}, v{s2}', f'v_add_f32 v{s1}, v{s1}, v{s2}',
          f'v_mov_b32 v{s2}, v{s1}', f'v_permlane32_swap_b32 v{s1}, v{s2}', f'v_add_f32 v{s1}, v{s1}, v{s2}',
          f'v_add_f32_dpp v{s1}, v{s1}, v{s1} quad_perm:[1,0,3,2] {DPPALL}',
          f'v_add_f32_dpp v{s1}, v{s1}, v{s1} quad_perm:[2,3,0,1] {DPPALL}',
          f'v_add_f32_dpp v{s1}, v{s1}, v{s1} row_half_mirror {DPPALL}',
          f'v_add_f32_dpp v{s1}, v{s1}, v{s1} row_mirror {DPPALL}',
          f'v_mul_f32 v{s1}, {f32hex(1.0/448)}, v{s1}',
          f'v_mov_b32 v{s2}, v{s1}', f'v_permlane16_swap_b32 v{s1}, v{s2}',
          f'v_fma_f32 v{s2}, -v{s1}, v{s1}, v{s2}',
          f'v_cvt_pk_bf16_f32 v{a}, v{s2}, v{s1}',
          f'v_lshlrev_b32 v{s2}, 16, v{a}',
          f'v_add_f32 v{s2}, {f32hex(1e-5)}, v{s2}',
          f'v_cvt_pk_bf16_f32 v{s2}, v{s2}, v{s2}',
          f'v_and_b32 v{s2}, 0xffff0000, v{s2}',
          f'v_sqrt_f32 v{s2}, v{s2}',
          f'v_and_b32 v{a}, 0xffff0000, v{a}',
          f'v_cvt_pk_bf16_f32 v{s2}, v{s2}, v{s2}',
          f'v_and_b32 v{s2}, 0xffff0000, v{s2}',
          f'v_rcp_f32 v{RS}, v{s2}',
          f'v_xor_b32 v{NEGM}, 0x80000000, v{a}']
    return o

def matvec14(p, mk):
    rd = lambda t: f'ds_read_b128 {vr(G + 4 * (t % 8), 4)}, v{vLrx} offset:{64 * t}'
    p.e(rd(0)); p.e(f'ds_read_b128 {vr(AB, 4)}, v{vLrs} offset:{XB_L}')
    for t in range(1, 8): p.e(rd(t))
    main = []
    for t in range(14):
        main += mk(t, vr(G + 4 * (t % 8), 4))
        if t + 8 < 14: main.append(rd(t + 8))
    return main

def retry(p, lab):
    p.e(f'v_cmp_eq_u32 vcc, -1, v{vChk}')
    p.e(f's_cbranch_vccnz {lab}_s')

def slow(p, lab):
    p.e(f'{lab}_s:')
    p.e(f's_sub_u32 s{sBud}, s{sBud}, 1')
    p.e('s_cbranch_scc1 L_end')
    p.e('s_nop 7')
    p.e(f's_branch {lab}')

def gen_chain(p, cfg):
    e = p.e
    e('L_chain:')
    e('s_load_dwordx16 s[64:79], s[0:1], 0')
    e('s_load_dwordx8 s[80:87], s[0:1], 64')
    lane, n, g, t0, t1, t2 = 32, 33, 34, 35, 36, 37
    OOBV = 38
    e(f'v_and_b32 v{lane}, 63, v0'); e(f'v_lshrrev_b32 v{t0}, 6, v0')
    e(f'v_readfirstlane_b32 s{sW}, v{t0}')
    e(f'v_and_b32 v{n}, 15, v0'); e(f'v_lshrrev_b32 v{g}, 4, v{lane}')
    e(f'v_mov_b32 v{OOBV}, 0x80000000')
    e(f's_lshr_b32 s4, s{sC}, 1')
    e(f's_and_b32 s5, s{sC}, 1'); e(f's_lshl_b32 s5, s5, 2'); e(f's_add_u32 s5, s5, s{sW}')
    e(f's_lshl_b32 s{sRing}, s{sW}, 12')
    if cfg.get('stamps'):
        e(f's_mov_b32 s{sStamp}, 0'); e(f'v_mov_b32 v{vSTAMP}, 0')
    r8, cs, rq = t0, t1, t2
    e(f'v_bfe_u32 v{r8}, v{lane}, 2, 3'); e(f'v_and_b32 v{cs}, 3, v{lane}'); e(f'v_lshrrev_b32 v{rq}, 5, v{lane}')
    e(f'v_lshl_add_u32 v{cs}, v{rq}, 2, v{cs}'); e(f'v_lshlrev_b32 v{cs}, 4, v{cs}')
    e(f'v_and_b32 v{rq}, 4, v{r8}'); e(f'v_add_u32 v{rq}, v{rq}, v{r8}')
    e(f's_lshr_b32 s6, s{sW}, 1'); e(f's_and_b32 s7, s{sW}, 1')
    e(f's_lshl_b32 s{sT}, s{sC}, 8'); e(f's_lshl_b32 s{sT2}, s6, 7'); e(f's_add_u32 s{sT}, s{sT}, s{sT2}')
    e(f's_lshl_b32 s{sT2}, s7, 18'); e(f's_add_u32 s{sT}, s{sT}, s{sT2}')
    e(f'v_lshl_add_u32 v{vDq}, v{rq}, 13, v{cs}'); e(f'v_add_u32 v{vDq}, s{sT}, v{vDq}')
    p.wait_all()
    def mk(b, ptr, size):
        e(f's_mov_b32 s{b}, s{ptr}'); e(f's_mov_b32 s{b+1}, s{ptr+1}'); e(f's_mov_b32 s{b+2}, {size}'); e(f's_mov_b32 s{b+3}, 0x20000')
    mk(WQ, 70, 448 * 8192)
    bl = batch_list()
    pol = cfg.get('wpol', 'nt')
    def dma(i):
        if i >= len(bl): return
        s, vo, so, _ = bl[i]
        for k in range(4):
            e(f's_add_u32 m0, s{sRing}, {(i % NB) * 16384 + k * 1024}')
            e(f's_mov_b32 s{sT}, {so[k]}')
            e(f'buffer_load_dwordx4 v{vo}, {srd(s)}, s{sT} offen {pol} lds', tag=('dma', i))
    def consume(i, refill=True):
        e(f'v_add_u32 v{vTa}, {(i % NB) * 16384}, v{bl[i][3][0][2]}')
        p.wait(('dma', i)); p.wait_all(vm=False)
        e('s_barrier')
        for d, off, a in bl[i][3]:
            e(f'ds_read_b64_tr_b16 {d}, v{vTa} offset:{off}')
        if i > 0 and refill: dma(i - 1 + NB)
        if cfg.get('istamp'): stamp(p, cfg)
    stamp(p, cfg)
    for i in range(2): dma(i)
    mk(WS, 86, WS_SIZE)
    if not cfg.get('noclear'):
        for k in range(4): e(f'v_mov_b32 v{48 + k}, -1')
        e(f'v_lshrrev_b32 v52, 3, v{lane}'); e(f'v_and_b32 v53, 7, v{lane}'); e('v_lshlrev_b32 v53, 4, v53')
        e('v_lshl_add_u32 v54, v52, 14, v53'); e('v_lshl_add_u32 v55, v52, 15, v53')
        e(f's_lshl_b32 s{sT}, s{sC}, 9'); e(f's_lshl_b32 s{sT2}, s{sW}, 7'); e(f's_add_u32 s{sT}, s{sT}, s{sT2}')
        assert QB0 == 0 and QBJ == 16384 and XBJ == 16384 and YBJ == 32768
        e(f'buffer_store_dwordx4 v[48:51], v54, {srd(WS)}, s{sT} offen sc1')
        e(f's_add_u32 s{sT2}, s{sT}, {XB0}')
        e(f'buffer_store_dwordx4 v[48:51], v54, {srd(WS)}, s{sT2} offen sc1')
        e(f's_lshl_b32 s{sT}, s{sT}, 1'); e(f's_add_u32 s{sT}, s{sT}, {YB0}')
        e(f'buffer_store_dwordx4 v[48:51], v55, {srd(WS)}, s{sT} offen sc1')
        e(f'buffer_store_dwordx4 v[48:51], v55, {srd(WS)}, s{sT} offen offset:128 sc1')
        e(f's_mul_i32 s{sT}, s4, {OBH}'); e(f's_lshl_b32 s{sT2}, s5, 10'); e(f's_add_u32 s{sT}, s{sT}, s{sT2}')
        e('s_cmp_eq_u32 s5, 7'); e(f's_cselect_b32 s{sT2}, 7, 4')
        e(f'v_lshlrev_b32 v52, s{sT2}, v{lane}'); e(f'v_cmp_gt_u32 vcc, 0x800, v52'); e(f'v_add_u32 v52, s{sT}, v52')
        e(f'v_cndmask_b32 v{vChk}, v{OOBV}, v52, vcc')
        e(f's_mov_b32 s{sT}, {OB0}')
        e(f'buffer_store_dwordx4 v[48:51], v{vChk}, {srd(WS)}, s{sT} offen sc1', tag='clr')
    for i in range(2, 7): dma(i)
    if cfg.get('istamp'): stamp(p, cfg)
    mk(WO, 72, 4096 * 896); mk(DBG, 84, 256)
    e('s_cmp_eq_u32 s7, 0'); e(f's_cselect_b32 s{WG}, s76, s78'); e(f's_cselect_b32 s{WG+1}, s77, s79')
    e(f's_mov_b32 s{WG+2}, {448 * 3584}'); e(f's_mov_b32 s{WG+3}, 0x20000')
    mk(WD, 80, 1792 * 896); mk(XS, 64, 3584); mk(OUT, 82, 3584)
    e(f's_mul_i32 s{sT}, s{sC}, {64 * 896}'); e(f's_lshl_b32 s{sT2}, s{sW}, 8'); e(f's_add_u32 s{sT}, s{sT}, s{sT2}')
    e(f'v_mul_u32_u24 v{vDd}, 896, v{rq}'); e(f'v_add3_u32 v{vDd}, v{vDd}, v{cs}, s{sT}')
    e(f's_mul_i32 s{sT}, s4, {256 * 896}'); e(f's_lshl_b32 s{sT2}, s5, 7'); e(f's_add_u32 s{sT}, s{sT}, s{sT2}')
    e('s_cmp_eq_u32 s5, 7'); e(f's_cselect_b32 s{sT}, 0x80000000, s{sT}')
    e(f'v_mul_u32_u24 v{vDo}, 896, v{rq}'); e(f'v_add3_u32 v{vDo}, v{vDo}, v{cs}, s{sT}')
    e(f's_lshl_b32 s{sT}, s{sC}, 7'); e(f's_mul_i32 s{sT2}, s6, {32 * 3584}'); e(f's_add_u32 s{sT}, s{sT}, s{sT2}')
    e(f'v_mul_u32_u24 v{vDg}, 3584, v{rq}'); e(f'v_add3_u32 v{vDg}, v{vDg}, v{cs}, s{sT}')
    e(f'v_lshrrev_b32 v{t1}, 5, v{lane}'); e(f'v_lshlrev_b32 v{t1}, 10, v{t1}')
    e(f'v_and_b32 v{t2}, 31, v{lane}'); e(f'v_lshl_add_u32 v{t2}, v{t2}, 4, v{t1}')
    e(f'v_add_u32 v{vTo}, s{sRing}, v{t2}')
    e(f's_lshl_b32 s{sT}, s6, 13'); e(f's_lshl_b32 s{sT2}, s7, 9'); e(f's_add_u32 s{sT}, s{sT}, s{sT2}'); e(f'v_add_u32 v{vTq}, s{sT}, v{t2}')
    e(f'v_lshl_add_u32 v{t1}, v{r8}, 6, v{t1}'); e(f'v_and_b32 v{t2}, 3, v{lane}'); e(f'v_lshl_add_u32 v{t1}, v{t2}, 3, v{t1}')
    e(f's_lshl_b32 s{sT}, s6, 9'); e(f's_lshl_b32 s{sT2}, s7, 5'); e(f's_add_u32 s{sT}, s{sT}, s{sT2}'); e(f'v_add_u32 v{vTg}, s{sT}, v{t1}')
    e(f's_lshl_b32 s6, s{sW}, 8')
    e(f'v_lshlrev_b32 v{t0}, 4, v{n}'); e(f'v_add_u32 v{t0}, s6, v{t0}')
    e(f'v_and_b32 v{t1}, 1, v{g}'); e(f'v_lshl_add_u32 v{t1}, v{t1}, 3, v{t0}')
    e(f'v_cmp_gt_u32 vcc, 896, v{t0}'); e(f'v_cmp_gt_u32 s[6:7], 2, v{g}')
    e(f'v_lshl_add_u32 v{t2}, v{g}, 10, v{t0}')
    e(f'v_cndmask_b32 v{vXg}, v{OOBV}, v{t2}, vcc')
    e(f'v_cndmask_b32 v{vOut}, v{OOBV}, v{t1}, vcc'); e(f'v_cndmask_b32 v{vOut}, v{OOBV}, v{vOut}, s[6:7]')
    for b in range(4):
        e(f'buffer_load_dwordx2 {vr(40 + 2 * b, 2)}, v{vOut}, {srd(XS)}, 0 offen offset:{b * 896}')
    e(f'v_add_u32 v{vLw}, {AUX}, v{t1}'); e(f'v_add_u32 v{t2}, {AUX + MIRR}, v{t1}')
    e(f'v_cndmask_b32 v{vLw}, v{t2}, v{vLw}, s[6:7]')
    e(f'v_lshrrev_b32 v{t0}, 2, v{n}'); e(f'v_lshlrev_b32 v{t1}, 4, v{g}'); e(f'v_lshl_add_u32 v{t1}, v{t0}, 6, v{t1}')
    e(f'v_and_b32 v{t2}, 3, v{n}'); e(f'v_cmp_eq_u32 vcc, 0, v{t2}'); e(f'v_cndmask_b32 v{t1}, v{OOBV}, v{t1}, vcc')
    e(f's_lshl_b32 s6, s{sW}, 8'); e(f'v_add_u32 v{t2}, s6, v{t1}')
    e(f'v_cmp_gt_u32 vcc, 896, v{t2}'); e(f's_lshl_b32 s6, s{sC}, 10'); e(f'v_add_u32 v{t2}, s6, v{t2}')
    e(f'v_cndmask_b32 v{vYp}, v{OOBV}, v{t2}, vcc')
    e(f's_lshl_b32 s6, s4, 10'); e('s_lshl_b32 s7, s5, 7'); e('s_add_u32 s6, s6, s7')
    e(f'v_add_u32 v{t2}, s6, v{t1}')
    e(f'v_cmp_gt_u32 vcc, 64, v{t1}'); e(f'v_cndmask_b32 v{vQp}, v{OOBV}, v{t2}, vcc')
    e('s_cmp_eq_u32 s5, 7'); e('s_cselect_b32 s7, 0, 128')
    e(f'v_cmp_gt_u32 vcc, s7, v{t1}'); e(f'v_cndmask_b32 v{vXp}, v{OOBV}, v{t2}, vcc')
    e(f's_lshr_b32 s6, s{sW}, 1'); e('s_mul_i32 s6, s6, 7'); e(f's_mul_i32 s7, s4, {OBH}')
    e(f's_and_b32 s{sT}, s{sW}, 1'); e(f's_lshl_b32 s{sT}, s{sT}, 8'); e(f's_add_u32 s{sT}, s{sT}, s7')
    e(f'v_add_u32 v{t0}, s6, v{g}'); e(f'v_lshlrev_b32 v{t0}, 9, v{t0}'); e(f'v_lshl_add_u32 v{t0}, v{n}, 4, v{t0}'); e(f'v_add_u32 v{vOBd}, s{sT}, v{t0}')
    e(f'v_cmp_gt_u32 vcc, 3, v{g}'); e(f'v_cndmask_b32 v{vOBe}, v{OOBV}, v{vOBd}, vcc')
    e(f'v_and_b32 v{t0}, 1, v{n}'); e(f'v_lshl_add_u32 v{t0}, v{t0}, 2, v{g}'); e(f'v_min_u32 v{t0}, 6, v{t0}')
    e(f's_sub_u32 s{sT}, 7, s6')
    e(f'v_mov_b32 v{t1}, s6'); e(f'v_mov_b32 v{t2}, s{sT}'); e(f'v_and_b32 v{vOBs}, 2, v{n}'); e(f'v_cmp_eq_u32 vcc, 0, v{vOBs}'); e(f'v_cndmask_b32 v{t1}, v{t2}, v{t1}, vcc')
    e(f'v_add_u32 v{t0}, v{t0}, v{t1}'); e(f'v_lshlrev_b32 v{t0}, 7, v{t0}'); e('s_add_u32 s7, s7, 7168'); e(f'v_add_u32 v{vOBs}, s7, v{t0}')
    e(f'v_lshlrev_b32 v{t0}, 4, v{g}'); e(f'v_and_b32 v{t1}, 1, v{n}')
    e(f'v_mul_u32_u24 v{t2}, {ONES + 128 - XB_L}, v{t1}'); e(f'v_add_u32 v{vLrx}, {AUX + XB_L}, v{t0}'); e(f'v_add_u32 v{vLrx}, v{vLrx}, v{t2}')
    e(f'v_lshl_add_u32 v{vLro}, v{t1}, 9, v{t0}'); e(f'v_add_u32 v{vLro}, {AUX + OBUF}, v{vLro}')
    e(f'v_lshlrev_b32 v{vLrs}, 4, v{lane}'); e(f'v_add_u32 v{vLrs}, {AUX}, v{vLrs}')
    e(f's_lshl_b32 s6, s{sW}, 5'); e(f's_add_u32 s6, s6, {AUX + HBUF}'); e(f'v_lshlrev_b32 v{vLwh}, 1, v{n}'); e(f'v_add_u32 v{vLwh}, s6, v{vLwh}')
    e(f'v_lshrrev_b32 v{t1}, 2, v{n}'); e(f'v_lshlrev_b32 v{t1}, 7, v{t1}'); e(f'v_add_u32 v{vLrh}, {AUX + HBUF}, v{t0}'); e(f'v_sub_u32 v{vLrh}, v{vLrh}, v{t1}')
    e(f'v_and_b32 v{t0}, 1, v{n}'); e(f'v_mov_b32 v{t1}, 0xffff'); e(f'v_lshlrev_b32 v{t0}, 4, v{t0}'); e(f'v_lshlrev_b32 v{t1}, v{t0}, v{t1}')
    e(f'v_bfe_u32 v{t0}, v{n}, 1, 2')
    for r in range(4):
        e(f'v_cmp_eq_u32 vcc, {r}, v{t0}'); e(f'v_cndmask_b32 v{MASK + r}, 0, v{t1}, vcc'); e(f'v_and_b32 v{OMASK + r}, 0x3f803f80, v{MASK + r}')
    e(f's_mov_b32 s{sM7}, -1'); e(f's_mov_b32 s{sM7+1}, 0x5555ffff')
    e(f's_mov_b32 s{sPre}, 0'); e(f's_mov_b32 s{sBud}, {cfg.get("budget", 100000)}'); seq = [12, 15] if cfg.get('istamp') else [12, 0, 10, 11, 1, 4, 2, 5, 3, 6, 7, 15]
    tab = sum(v << (4 * i) for i, v in enumerate(seq))
    e(f's_mov_b32 s{sTab}, {tab & 0xffffffff}'); e(f's_mov_b32 s{sTab+1}, {tab >> 32}')
    for k in range(4): e(f'v_mov_b32 v{52 + k}, 0x3f803f80'); e(f'v_mov_b32 v{56 + k}, 0')
    e(f'ds_write_b128 v{vLrs}, v[52:55] offset:{ONES}'); e(f'ds_write_b128 v{vLrs}, v[56:59] offset:{HZ}')
    early = cfg.get('early', 0)
    for i in range(7, 7 + early): dma(i)
    if cfg.get('istamp'): stamp(p, cfg)
    for i in range(7): consume(i, refill=False)
    for b in range(4):
        e(f'ds_write_b64 v{vLw}, {vr(40 + 2 * b, 2)} offset:{RES + b * 1024}')
    p.wait('clr')
    p.wait_all(vm=False)
    e('s_barrier')
    if not cfg.get('noclear'):
        e(f's_cmp_lg_u32 s{sW}, 0'); e('s_cbranch_scc1 L_c_noat')
        e(f'v_mov_b32 v{t0}, 1'); e(f'v_cmp_eq_u32 vcc, 0, v{lane}'); e(f'v_cndmask_b32 v{t1}, v{OOBV}, v{lane}, vcc')
        e(f'buffer_atomic_add v{t0}, v{t1}, {srd(DBG)}, 0 offen offset:{CNT_C} sc1', nocount=True)
        e('L_c_noat:')
    stamp(p, cfg)
    snap_stage = p.snapshot()
    e(f's_mov_b32 s{sB}, 0')
    p.flush(); e('s_branch L_initjob')
    e('L_stage2:')
    p.restore(snap_stage)
    if not cfg.get('noclear'):
        for k in range(4): e(f'v_mov_b32 v{48 + k}, -1')
        for j in range(1, 8):
            e(f's_mov_b32 s{sT}, {OB0 + j * OBJ}')
            e(f'buffer_store_dwordx4 v[48:51], v{vChk}, {srd(WS)}, s{sT} offen sc1')
    for i in range(7 + early, 6 + NB): dma(i)
    for i in range(7, len(bl)):
        if i == 15:
            e(f's_cmp_lt_u32 s{sC}, 28'); e('s_cbranch_scc1 L_st_go')
            e('s_waitcnt vmcnt(0) lgkmcnt(0)'); e('s_branch L_st_done'); e('L_st_go:')
        consume(i)
    p.wait_all()
    e('L_st_done:')
    stamp(p, cfg)
    e(f's_mov_b32 s{sB}, 1')
    e('s_branch L_initjob')
    e('L_next:')
    p.reset_queues()
    e(f's_and_b32 s{sT}, s{sTab}, 15'); e(f's_lshr_b64 s[{sTab}:{sTab+1}], s[{sTab}:{sTab+1}], 4')
    e(f's_and_b32 s{sB}, s{sT}, 3')
    e(f's_cmp_lt_u32 s{sT}, 8'); e('s_cbranch_scc1 L_real')
    e(f's_cmp_eq_u32 s{sT}, 15'); e('s_cbranch_scc1 L_cend')
    e(f's_cmp_eq_u32 s{sT}, 12'); e('s_cbranch_scc1 L_stage2')
    e('L_initjob:')
    e(f's_lshl_b32 s{sRes}, s{sB}, 10'); e(f's_add_u32 s{sRes}, s{sRes}, {RES}')
    e(f's_mul_i32 s{sQB}, s{sB}, {QBJ}')
    if QB0: e(f's_add_u32 s{sQB}, s{sQB}, {QB0}')
    e(f'v_add_u32 v{vRes}, s{sRes}, v{vLw}')
    e(f'ds_read_b64 {vr(P, 2)}, v{vRes}')
    e('s_barrier')
    p.wait_all(vm=False)
    e('s_branch L_x2')
    e('L_real:')
    e(f's_cmp_lg_u32 s{sT}, 0'); e('s_cbranch_scc1 L_dec')
    e('L_cnt:')
    e(f'v_mov_b32 v{T}, 0')
    e(f'buffer_load_dword v{G}, v{T}, {srd(DBG)}, 0 offen offset:{CNT_C} sc1')
    e(f'v_cmp_gt_u32 vcc, 32, v{G}')
    e('s_cbranch_vccnz L_cnt_s')
    e('L_dec:')
    e(f's_lshr_b32 s{sL2}, s{sT}, 2')
    e(f's_mul_i32 s{sOB}, s{sT}, {OBJ}'); e(f's_add_u32 s{sOB}, s{sOB}, {OB0}')
    e(f's_mul_i32 s{sXB}, s{sT}, {XBJ}'); e(f's_add_u32 s{sXB}, s{sXB}, {XB0}')
    e(f's_mul_i32 s{sYB}, s{sT}, {YBJ}'); e(f's_add_u32 s{sYB}, s{sYB}, {YB0}')
    e(f's_mul_i32 s{sQB}, s{sB}, {QBJ}'); e(f's_add_u32 s{sQB}, s{sQB}, {QB0 + 4 * QBJ}')
    e(f's_lshl_b32 s{sRes}, s{sB}, 10'); e(f's_add_u32 s{sRes}, s{sRes}, {RES}')
    e(f's_mul_i32 s{sOut}, s{sB}, 896')
    e(f's_add_u32 s{sT}, s{sB}, 28'); e(f's_cmp_lg_u32 s{sT}, s{sC}'); e(f's_cselect_b32 s{sDes}, s{sL2}, 0')
    e('L_job:')
    e(f'v_add_u32 v{vRes}, s{sRes}, v{vLw}')
    e(f'ds_read_b64 {vr(P, 2)}, v{vRes}')
    def unpack():
        return [f'v_lshlrev_b32 v{R}, 16, v{P}', f'v_and_b32 v{R+1}, 0xffff0000, v{P}',
                f'v_lshlrev_b32 v{R+2}, 16, v{P+1}', f'v_and_b32 v{R+3}, 0xffff0000, v{P+1}']
    e(unpack())
    stamp(p, cfg)
    e(f's_cmp_lg_u32 s{sPre}, 0'); e(f's_mov_b32 s{sPre}, 0'); e('s_cbranch_scc1 L_s1b')
    def obloads(so):
        e(f'buffer_load_dwordx2 {vr(ST, 2)}, v{vOBs}, {srd(WS)}, s{so} offen sc1')
        e(f'buffer_load_dwordx4 {vr(OG, 4)}, v{vOBd}, {srd(WS)}, s{so} offen sc1')
        e(f'buffer_load_dwordx4 {vr(OG + 4, 4)}, v{vOBe}, {srd(WS)}, s{so} offen offset:2048 sc1')
    e('L_s1:')
    obloads(sOB)
    e('L_s1b:')
    m, t = T, T + 1
    e(f'v_max_f32_dpp v{m}, v{ST}, v{ST} quad_perm:[1,0,3,2] {DPPALL}')
    e(f'v_max_f32_dpp v{m}, v{m}, v{m} quad_perm:[2,3,0,1] {DPPALL}')
    e(f'v_mov_b32 v{t}, v{m}'); e(f'v_permlane16_swap_b32 v{m}, v{t}'); e(f'v_max_f32 v{m}, v{m}, v{t}')
    e(f'v_mov_b32 v{t}, v{m}'); e(f'v_permlane32_swap_b32 v{m}, v{t}'); e(f'v_max_f32 v{m}, v{m}, v{t}')
    e(f'v_sub_f32 v{WF}, v{ST}, v{m}'); e(f'v_exp_f32 v{WF}, v{WF}')
    e(f'v_cvt_pk_bf16_f32 v{WW}, v{WF}, v{WF}')
    ands = lambda L: [f'v_and_b32_dpp v{AB + 4 * L + r}, v{WW}, v{MASK + r} quad_perm:[{L},{L},{L},{L}] {DPPALL}' for r in range(4)]
    e(ands(0)); e(ands(1)[:2])
    e(f'{MF} {vr(ACC, 4)}, {vr(AB, 4)}, {vr(OG, 4)}, 0')
    e(ands(1)[2:]); e(f'v_max3_u32 v{vChk}, v{ST}, v{OG}, v{OG+4}')
    e(f'{MF} {vr(ACC, 4)}, {vr(AB + 4, 4)}, {vr(OG + 4, 4)}, {vr(ACC, 4)}')
    retry(p, 'L_s1')
    e(f'v_mul_f32 v{DEN}, v{WF}, v{ST+1}'); e(f'v_cndmask_b32 v{DEN}, 0, v{DEN}, s[{sM7}:{sM7+1}]')
    e(f'v_cvt_pk_bf16_f32 v{P}, v{ACC}, v{ACC+1}'); e(f'v_cvt_pk_bf16_f32 v{P+1}, v{ACC+2}, v{ACC+3}')
    e(f'ds_write_b64 v{vLw}, {vr(P, 2)} offset:{OBUF}')
    p.wait_all(vm=False); e('s_barrier')
    stamp(p, cfg)
    for tt in range(8): e(f'ds_read_b128 {vr(G + 4 * tt, 4)}, v{vLro} offset:{64 * tt}')
    acc = lambda pi, s: ACC + 4 * (2 * s + pi)
    mf = lambda pi, s, tt: f'{MF} {vr(acc(pi, s), 4)}, {frag(F_WO(pi, s, tt))}, {vr(G + 4 * tt, 4)}, {"0" if tt == 0 else vr(acc(pi, s), 4)}'
    add = lambda pi, s: [f'v_add_f32_dpp v{AB + 4 * s + r}, v{acc(pi, s) + r}, v{acc(pi, s) + r} quad_perm:[1,0,3,2] row_mask:0xf bank_mask:{"0xf" if pi == 0 else "0x2"}' for r in range(4)]
    fin = lambda s: [f'v_mul_f32 v{AB + 4 * s + r}, v{DEN}, v{AB + 4 * s + r}' for r in range(4)] + \
                    [f'v_cvt_pk_bf16_f32 v{AB + 2 * s}, v{AB + 4 * s}, v{AB + 4 * s + 1}', f'v_cvt_pk_bf16_f32 v{AB + 2 * s + 1}, v{AB + 4 * s + 2}, v{AB + 4 * s + 3}']
    d = DEN
    den = [f'v_add_f32_dpp v{d}, v{d}, v{d} quad_perm:[1,0,3,2] {DPPALL}', f'v_add_f32_dpp v{d}, v{d}, v{d} quad_perm:[2,3,0,1] {DPPALL}',
           f'v_mov_b32 v{t}, v{d}', f'v_permlane16_swap_b32 v{d}, v{t}', f'v_add_f32 v{d}, v{d}, v{t}',
           f'v_mov_b32 v{t}, v{d}', f'v_permlane32_swap_b32 v{d}, v{t}', f'v_add_f32 v{d}, v{d}, v{t}', f'v_rcp_f32 v{d}, v{d}']
    e(weave([mf(pi, 0, tt) for tt in range(8) for pi in range(2)], den, per=1))
    e(weave([mf(0, 1, tt) for tt in range(8)], add(0, 0) + add(1, 0), per=2, start=4))
    e(weave([mf(1, 1, tt) for tt in range(8)], fin(0) + add(0, 1), per=2, start=1))
    e(add(1, 1)); e(fin(1))
    e(f'buffer_store_dwordx4 {vr(AB, 4)}, v{vXp}, {srd(WS)}, s{sXB} offen sc1')
    stamp(p, cfg)
    def gsum(lab, base, nl):
        e(f'{lab}:')
        for L in range(nl):
            so = base
            if L: e(f's_add_u32 s{sT}, s{base}, {4096 * L}'); so = sT
            e(f'buffer_load_dwordx4 {vr(G + 4 * L, 4)}, v{vXg}, {srd(WS)}, s{so} offen sc1')
        for L in range(nl):
            e(f'{MF} {vr(ACC, 4)}, {vr(OMASK, 4)}, {vr(G + 4 * L, 4)}, {vr(R, 4) if L == 0 else vr(ACC, 4)}')
            if L == 1: e(f'v_max_u32 v{vChk}, v{G}, v{G+4}')
            elif L > 1: e(f'v_max_u32 v{vChk}, v{vChk}, v{G + 4 * L}')
        retry(p, lab)
        e(f'v_cvt_pk_bf16_f32 v{P}, v{ACC}, v{ACC+1}'); e(f'v_cvt_pk_bf16_f32 v{P+1}, v{ACC+2}, v{ACC+3}')
    gsum('L_xs', sXB, 4)
    e(f'ds_write_b64 v{vLw}, {vr(P, 2)} offset:{XB_L}')
    e(unpack())
    e(f's_cmp_ge_u32 s{sC}, 28')
    p.wait_all(vm=False); e('s_barrier')
    e('s_cbranch_scc1 L_noffn')
    stamp(p, cfg)
    main = matvec14(p, lambda tt, x: [f'{MF} {vr(ACC, 4)}, {x}, {frag(F_WG(tt))}, {"0" if tt == 0 else vr(ACC, 4)}',
                                      f'{MF} {vr(ACC + 4, 4)}, {x}, {frag(F_WU(tt))}, {"0" if tt == 0 else vr(ACC + 4, 4)}'])
    e(weave(main, stats_side(AB) + [f'v_mul_f32 v{RS}, v{RS}, v{RS}'], per=2))
    e(f'v_fmac_f32 v{ACC}, v{NEGM}, v{ACC+1}'); e(f'v_fmac_f32 v{ACC+4}, v{NEGM}, v{ACC+5}')
    e(f'v_max_f32 v{ACC}, 0, v{ACC}'); e(f'v_mul_f32 v{ACC+4}, v{RS}, v{ACC+4}'); e(f'v_mul_f32 v{ACC}, v{ACC}, v{ACC+4}')
    e(f'v_cvt_pk_bf16_f32 v{ACC}, v{ACC}, v{ACC}')
    e(f'ds_write_b16 v{vLwh}, v{ACC}')
    p.wait_all(vm=False); e('s_barrier')
    for tt in range(2):
        for k in range(4): e(f'ds_read_b128 {vr(G + 4 * (4 * tt + k), 4)}, v{vLrh} offset:{128 * k + 64 * tt}')
    for tt in range(2):
        for k in range(4):
            for s in range(2):
                first = tt == 0 and k == 0
                e(f'{MF} {vr(ACC + 4 * s, 4)}, {frag(F_WD(k, s, tt))}, {vr(G + 4 * (4 * tt + k), 4)}, {"0" if first else vr(ACC + 4 * s, 4)}')
    e(f's_cmp_lg_u32 s{sL2}, 0')
    for k in range(4): e(f'v_cvt_pk_bf16_f32 v{AB + k}, v{ACC + 2 * k}, v{ACC + 2 * k + 1}')
    e(f'buffer_store_dwordx4 {vr(AB, 4)}, v{vYp}, {srd(WS)}, s{sYB} offen sc1')
    e('s_cbranch_scc1 L_next')
    stamp(p, cfg)
    e('L_ysp:')
    if not cfg.get('nopre'):
        e(f's_and_b32 s{sT}, s{sTab}, 15'); e(f's_sub_u32 s{sT2}, s{sT}, 4'); e(f's_cmp_ge_u32 s{sT2}, 4'); e('s_cbranch_scc1 L_ys')
        e(f's_mul_i32 s{sT}, s{sT}, {OBJ}'); e(f's_add_u32 s{sT2}, s{sT}, {OB0}'); e(f's_mov_b32 s{sPre}, 1')
        obloads(sT2)
        p.reset_queues()
    gsum('L_ys', sYB, 7)
    e(f's_cmp_lg_u32 s{sL2}, 0'); e('s_cbranch_scc1 L_out')
    e('L_x2:')
    e(f'ds_write_b64 v{vLw}, {vr(P, 2)} offset:{XB_L}')
    e(f'ds_write_b64 v{vRes}, {vr(P, 2)}')
    p.wait_all(vm=False); e('s_barrier')
    stamp(p, cfg)
    main = matvec14(p, lambda tt, x: [f'{MF} {vr(ACC + 4 * s, 4)}, {frag(F_WQ(s, tt))}, {x}, {"0" if tt == 0 else vr(ACC + 4 * s, 4)}' for s in range(2)])
    e(weave(main, stats_side(AB), per=2))
    for k in range(8): e(f'v_fmac_f32_dpp v{ACC + k}, v{ACC + k}, v{NEGM} quad_perm:[1,1,3,3] {DPPALL}')
    for k in range(8): e(f'v_mul_f32 v{ACC + k}, v{RS}, v{ACC + k}')
    for k in range(4): e(f'v_cvt_pk_bf16_f32 v{AB + k}, v{ACC + 2 * k}, v{ACC + 2 * k + 1}')
    e(f'buffer_store_dwordx4 {vr(AB, 4)}, v{vQp}, {srd(WS)}, s{sQB} offen sc1')
    stamp(p, cfg)
    p.flush(); e('s_branch L_next')
    e('L_noffn:')
    e(f's_cmp_lg_u32 s{sDes}, 0'); e('s_cbranch_scc1 L_next')
    e('s_branch L_ysp')
    e('L_out:')
    e(f'buffer_store_dwordx2 {vr(P, 2)}, v{vOut}, {srd(OUT)}, s{sOut} offen')
    stamp(p, cfg)
    e('s_branch L_next')
    for lab in ('L_s1', 'L_xs', 'L_ys', 'L_cnt'): slow(p, lab)
    e('L_cend:')
    if cfg.get('stamps'):
        e(f's_lshl_b32 s4, s{sC}, 2'); e(f's_add_u32 s4, s4, s{sW}'); e('s_lshl_b32 s4, s4, 8'); e(f's_add_u32 s4, s4, {STAMP0}')
        e(f'v_and_b32 v1, 63, v0'); e('v_lshlrev_b32 v1, 2, v1')
        e(f'buffer_store_dword v{vSTAMP}, v1, {srd(WS)}, s4 offen')
    e('s_branch L_end')
```

```python
from asmlib import *
from common import *
import math

vK, vV, vL, vQ, vO, vSTAMP, M1, L1 = range(8)
MASK = 8; Q = 12; S1 = 20; S2 = 25; TA = 30; TB = 31
ACC1 = 32; U = 40; STG = 52; BX = 60
M2, L2, TC, TD = 48, 49, 50, 51
KS, VS, WS, DBG = 8, 12, 16, 20
sW = 3
sOff, sBase, sLast, sBias, sQ1, sQ2, sO1, sO2, sPh, sLds, sBud, sSc, sCnt = range(24, 37)
sStamp = 38; sSt = 40; sLoc = 37
MF = 'v_mfma_f32_16x16x32_bf16'
DPPALL = 'row_mask:0xf bank_mask:0xf'
OOB = 0x40000000
def srd(b): return f's[{b}:{b+3}]'

KL = [k for k in range(38) if k % 4 == 1]
VL = [38 + k for k in range(38) if k % 4 == 0]
def slot_map():
    m = {}
    r = 0
    for s in range(2):
        l = 0
        for k in VL + KL:
            m[(s, k)] = ('l', s * 20 + l); l += 1
        for k in range(76):
            if (s, k) not in m:
                m[(s, k)] = ('r', r); r += 1
    assert r == 112
    return m
SM = slot_map()
def treg(r): return vr(64 + 4 * r, 4) if r < 48 else vr(4 * (r - 48), 4, 'a')

class Use:
    def __init__(self, fmt, s, k, p1): self.fmt = fmt; self.s = s; self.k = k; self.p1 = p1
class Mark:
    def __init__(self, name): self.name = name

def stamp_items(cfg):
    if not cfg.get('stamps'): return []
    return [f's_memrealtime s[{sSt}:{sSt+1}]', lambda p: p.wait_all(vm=False), f's_mov_b32 m0, s{sStamp}',
            f'v_writelane_b32 v{vSTAMP}, s{sSt}, m0', f's_add_u32 s{sStamp}, s{sStamp}, 1']

def load_items(s, k, cfg):
    o = []
    kk = k % 38
    if k == 38 or k == 0: o.append(f's_mov_b32 s{sOff}, s{sBase}')
    elif kk == 36: o.append(f's_add_u32 s{sOff}, s{sOff}, s{sLast}')
    elif kk % 4 == 0: o.append(f's_add_u32 s{sOff}, s{sOff}, 4096')
    off = ((kk >> 1) & 1) * 2048 + (kk & 1) * 256
    vo, sr = (vK, KS) if k < 38 else (vV, VS)
    kind, idx = SM[(s, k)]
    if kind == 'l':
        o.append(f's_add_u32 m0, s{sLds}, {idx * 1024 - off}')
        o.append(I(f'buffer_load_dwordx4 v{vo}, {srd(sr)}, s{sOff} offen offset:{off} nt lds', tag=('ld', s, k)))
    else:
        o.append(I(f'buffer_load_dwordx4 {treg(idx)}, v{vo}, {srd(sr)}, s{sOff} offen offset:{off} nt', tag=('ld', s, k)))
    return o

def qk_units(s, S, p1):
    units = []
    acc = lambda t: U + 4 * (t % 3)
    for t in range(22):
        u = []
        if t < 19:
            a = vr(acc(t), 4)
            u.append(Use(f'{MF} {a}, %s, {vr(Q, 4)}, 0', s, 2 * t, p1))
            u.append(Use(f'{MF} {a}, %s, {vr(Q + 4, 4)}, {a}', s, 2 * t + 1, p1))
        if t == 2: u.append(f'v_mov_b32 v{S + 4}, 0xff800000')
        c = t - 3
        if c >= 0:
            u.append(f'v_add_f32_dpp v{S + (c >> 2)}, v{TB}, v{TA} quad_perm:[2,2,2,2] row_mask:0xf bank_mask:{hex(1 << (c & 3))}')
        c = t - 2
        if 0 <= c < 19:
            a = acc(c)
            u.append(f'v_add_f32_dpp v{TA}, v{a + 1}, v{a} quad_perm:[1,1,1,1] {DPPALL}')
            u.append(f'v_add_f32_dpp v{TB}, v{a + 3}, v{a + 2} quad_perm:[3,3,3,3] {DPPALL}')
            if c == 18: u.append(f'v_add_f32 v{TA}, s{sBias}, v{TA}')
        units.append(u)
    return units

def red(op, x, t):
    return [f'{op}_dpp v{x}, v{x}, v{x} row_ror:4 {DPPALL}', f'{op}_dpp v{x}, v{x}, v{x} row_ror:8 {DPPALL}',
            f'v_mov_b32 v{t}, v{x}', f'v_permlane16_swap_b32 v{x}, v{t}', f'{op} v{x}, v{x}, v{t}',
            f'v_mov_b32 v{t}, v{x}', f'v_permlane32_swap_b32 v{x}, v{t}', f'{op} v{x}, v{x}, v{t}']

def softmax(S, M, L):
    o = [f'v_max3_f32 v{M}, v{S}, v{S+1}, v{S+2}', f'v_max3_f32 v{M}, v{M}, v{S+3}, v{S+4}']
    o += red('v_max_f32', M, TA)
    o.append(f'v_mul_f32 v{M}, s{sSc}, v{M}')
    for u in range(5): o.append(f'v_fma_f32 v{S+u}, v{S+u}, s{sSc}, -v{M}')
    for u in range(5): o.append(f'v_exp_f32 v{S+u}, v{S+u}')
    o += [f'v_add_f32 v{L}, v{S}, v{S+1}', f'v_cvt_pk_bf16_f32 v{S}, v{S}, v{S}', f'v_add_f32 v{TB}, v{S+2}, v{S+3}',
          f'v_cvt_pk_bf16_f32 v{S+1}, v{S+1}, v{S+1}', f'v_add_f32 v{L}, v{L}, v{S+4}', f'v_cvt_pk_bf16_f32 v{S+2}, v{S+2}, v{S+2}',
          f'v_add_f32 v{L}, v{L}, v{TB}', f'v_cvt_pk_bf16_f32 v{S+3}, v{S+3}, v{S+3}', f'v_cvt_pk_bf16_f32 v{S+4}, v{S+4}, v{S+4}']
    return o, red('v_add_f32', L, TA)

def ands(S, t, buf):
    return [f'v_and_b32_dpp v{buf + r}, v{S + (t >> 2)}, v{MASK + r} row_newbcast:{4 * (t & 3)} {DPPALL}' for r in range(4)]
def pv_m(s, t, j, acc, buf, p1):
    a = vr(acc + 4 * j, 4)
    return Use(f'{MF} {a}, {vr(buf, 4)}, %s, {"0" if t == 0 else a}', s, 38 + 2 * t + j, p1)

def pv_units(s, S, acc, bufs, t0, t1, p1):
    units = [ands(S, t0, bufs[t0 % 2])]
    for t in range(t0, t1):
        nx = ands(S, t + 1, bufs[(t + 1) % 2]) if t + 1 < t1 else []
        units.append(nx[:2] + [pv_m(s, t, 0, acc, bufs[t % 2], p1)] + nx[2:] + [pv_m(s, t, 1, acc, bufs[t % 2], p1)])
    return units

ALT = {}
def publish(acc, M, L, so, slot, A, pw, lab):
    t0, t1, ad, tl = BX, BX + 1, A + 4, A + 4
    o = [f'v_cvt_pk_bf16_f32 v{acc + k}, v{acc + 2 * k}, v{acc + 2 * k + 1}' for k in range(4)]
    o += [f'v_mov_b32_dpp v{acc}, v{M} quad_perm:[0,0,0,0] row_mask:0xc bank_mask:0xf',
          f'v_mov_b32_dpp v{acc + 1}, v{L} quad_perm:[0,0,0,0] row_mask:0xc bank_mask:0xf',
          I(f'ds_write_b128 v{vL}, {vr(acc, 4)} offset:{slot * 1024}', tag='cw'),
          f'v_subrev_u32 v{ad}, s{sLds}, v{vL}', f'v_lshrrev_b32 v{t0}, 8, v{ad}', f'v_mul_u32_u24 v{t0}, {40960 - 256}, v{t0}', f'v_add_u32 v{ad}, v{ad}, v{t0}',
          f's_cmp_lg_u32 s{sW}, {pw}',
          lambda p: p.wait_all(vm=False), 's_barrier', f's_cbranch_scc1 {lab}',
          f'ds_read_b64 {vr(M, 2)}, v{ad} offset:{slot * 1024 + 512}',
          f'ds_read_b128 {vr(acc, 4)}, v{ad} offset:{slot * 1024}', f'ds_read_b128 {vr(acc + 4, 4)}, v{ad} offset:{slot * 1024 + 256}',
          f'v_mov_b32 v{t0}, v{M}', f'v_mov_b32 v{t1}, v{M}', f'v_permlane16_swap_b32 v{t0}, v{t1}', f'v_max_f32 v{t0}, v{t0}, v{t1}',
          f'v_mov_b32 v{t1}, v{t0}', f'v_permlane32_swap_b32 v{t0}, v{t1}', f'v_max_f32 v{tl}, v{t0}, v{t1}',
          f'v_sub_f32 v{M}, v{M}, v{tl}', f'v_exp_f32 v{M}, v{M}', f'v_cvt_pk_bf16_f32 v{t0}, v{M}, v{M}']
    o += [f'v_and_b32 v{A + r}, v{t0}, v{MASK + r}' for r in range(4)] + [f's_cmp_lg_u32 s{sLoc}, 0']
    o += [f'v_mul_f32 v{L}, v{L}, v{M}', f'v_mov_b32 v{M}, v{L}',
          f'{MF} {vr(BX, 4)}, {vr(A, 4)}, {vr(acc, 4)}, 0', f'{MF} {vr(acc, 4)}, {vr(A, 4)}, {vr(acc + 4, 4)}, 0',
          f'v_permlane16_swap_b32 v{L}, v{M}', f'v_add_f32 v{L}, v{L}, v{M}', f'v_mov_b32 v{M}, v{L}',
          f'v_permlane32_swap_b32 v{L}, v{M}', f'v_add_f32 v{L}, v{L}, v{M}',
          f'v_cvt_pk_bf16_f32 v{BX}, v{BX}, v{BX + 1}', f'v_cvt_pk_bf16_f32 v{BX + 1}, v{BX + 2}, v{BX + 3}',
          f'v_cvt_pk_bf16_f32 v{BX + 2}, v{acc}, v{acc + 1}', f'v_cvt_pk_bf16_f32 v{BX + 3}, v{acc + 2}, v{acc + 3}',
          f'v_mov_b32_dpp v{BX}, v{tl} quad_perm:[0,1,2,3] row_mask:0xc bank_mask:0xf',
          f'v_mov_b32_dpp v{BX + 1}, v{L} quad_perm:[0,1,2,3] row_mask:0xc bank_mask:0xf',
          f's_cbranch_scc1 {lab}_g',
          I(f'buffer_store_dwordx4 {vr(BX, 4)}, v{vO}, {srd(WS)}, s{so} offen', nocount=True),
          lambda p: p.flush(), f'{lab}:']
    ALT[lab] = f'buffer_store_dwordx4 {vr(BX, 4)}, v{vO}, {srd(WS)}, s{so} offen sc1'
    return o

def qloads(so):
    return [f'buffer_load_dwordx4 {vr(Q, 4)}, v{vQ}, {srd(WS)}, s{so} offen sc1',
            f'buffer_load_dwordx4 {vr(Q + 4, 4)}, v{vQ}, {srd(WS)}, s{so} offen offset:512 sc1']
def qcheck(lab):
    return [f'v_max_u32 v{TA}, v{Q}, v{Q + 4}', f'v_cmp_eq_u32 vcc, -1, v{TA}', f's_cbranch_vccnz {lab}_s', f'{lab}_r:']

def build_phase(s, cfg):
    D = cfg['D']; T1 = cfg['T1']; TQ1 = cfg['TQ1']; TQ2 = cfg['TQ2']
    o = 1 - s
    work = {t: [] for t in range(-1, 76)}
    flat = lambda us: [x for u in us for x in u]
    nrest = cfg.get('nrest', (D + 1) // 2 + 0)
    tr0 = 19 - nrest
    qk2 = qk_units(s, S2, False)
    sm2, lr2 = softmax(S2, M2, L2)
    pv2 = pv_units(s, S2, U, [Q, Q + 4], 0, 19, False)
    per = cfg.get('qk2per', 4)
    pub_slots = []
    slot = -1
    for i in range(0, 22, per):
        work[slot] += flat(qk2[i:i + per]); slot += 1
    qk2_end = slot
    for t in range(tr0, 19):
        sl = max(39 + 2 * t + D - 76, 0) - 1
        sl = max(sl, -1)
        if t == 18: sl = max(sl, 18 // per - 1)
        it = ands(S1, t, BX) + [pv_m(o, t, 0, ACC1, BX, True), pv_m(o, t, 1, ACC1, BX, True)]
        if t == 18:
            if s == 1: it += [f's_cmp_eq_u32 s{sPh}, 5', 's_cbranch_scc1 L_skip1']
            it += publish(ACC1, M1, L1, sO1, SM[(s, 37)][1], S1, 0, f'L_np1{s}') + stamp_items(cfg)
            pub_slots.append(sl)
        work[sl] += it
    slot = max(qk2_end, 0)
    work[slot] += sm2; slot += 1
    pvper = cfg.get('pv2per', 4)
    first = True
    for i in range(0, len(pv2), pvper):
        it = flat(pv2[i:i + pvper])
        work[slot] += it
        if first:
            work[slot] += lr2; first = False
        slot += 1
    pub_slots.append(slot - 1)
    work[slot - 1] += publish(U, M2, L2, sO2, SM[(s, 33)][1], Q, 1, f'L_np2{s}') + stamp_items(cfg) + [f's_cmp_ge_u32 s{sPh}, 4', f's_cbranch_scc1 L_tail{s}']
    assert slot - 1 + D + cfg.get('X', 0) < T1, (slot, T1)
    work[T1 - 1] += [f'L_p2_{s}:', Mark('p2')]
    assert TQ1 >= T1
    work[cfg.get('TB3', 24)] += ['s_barrier']
    assert cfg.get('TB3', 24) < T1
    work[TQ1] += qloads(sQ1)
    slot = TQ1 + D
    work[slot] += qcheck(f'L_q1{s}') + stamp_items(cfg)
    assert slot >= 37 + D - 5
    qk1 = qk_units(s, S1, True)
    per = cfg.get('qk1per', 4)
    for i in range(0, 22, per):
        slot = max(slot, min(2 * (i + per - 1) + 1, 37) + D)
        work[slot] += flat(qk1[i:i + per]); slot += 1
    sm1, lr1 = softmax(S1, M1, L1)
    work[slot] += sm1 + lr1; slot += 1
    pv1 = pv_units(s, S1, ACC1, [U, U + 4], 0, tr0, True)
    work[slot - 1] += pv1[0]
    cnt = 0; pvper = cfg.get('pv1per', 4)
    for t in range(tr0):
        need = 39 + 2 * t + D
        if need > slot: slot = need; cnt = 0
        if cnt == pvper: slot += 1; cnt = 0
        assert slot <= 75, (t, slot)
        work[slot] += pv1[t + 1]; cnt += 1
    assert slot > TQ2 or True
    work[TQ2] = qloads(sQ2) + [Mark('q2')] + work[TQ2]
    upd = [f's_add_u32 s{sPh}, s{sPh}, 1',
           f's_lshl_b32 s{sBase}, s{sPh}, 25', f's_cmp_ge_u32 s{sPh}, 4', f's_cselect_b32 s{sBase}, 0x80000000, s{sBase}',
           f's_add_u32 s{sQ1}, s{sQ1}, {QBJ}', f's_add_u32 s{sQ2}, s{sQ1}, {3 * QBJ}',
           f's_mul_i32 s{sO1}, s{sPh}, {OBJ}', f's_add_u32 s{sO2}, s{sO1}, {OB0 + 2 * OBJ}', f's_add_u32 s{sO1}, s{sO1}, {OB0 - OBJ}',
           f's_cmp_ge_u32 s{sPh}, 5', f's_cselect_b32 s{sO1}, {OOB}, s{sO1}',
           f's_cmp_lt_u32 s{sPh}, 2', f's_cselect_b32 s{sO2}, {OOB}, s{sO2}']
    work[75] += qcheck(f'L_q2{s}') + stamp_items(cfg) + upd
    items = [f'L_ph{s}:'] + work[-1]
    pend = []
    for k in range(76):
        pk = (s, k - D) if k >= D else (o, k - D + 76)
        X = cfg.get('X', 0)
        skip = any(ps + 1 + D <= k <= ps + D + X for ps in pub_slots)
        pend.append(Mark(('landed',) + pk))
        if not skip:
            items.append(lambda p, pk=pk: p.wait(('ld',) + pk))
            items += pend; pend = []
        items += load_items(s, k, cfg)
        items += work[k]
    return items

def resolve(items, cfg):
    n = len(items)
    uses = [i for i, x in enumerate(items) if isinstance(x, Use) and SM[(x.s, x.k)][0] == 'l']
    assert len(uses) % 2 == 0
    marks = {}
    for i, x in enumerate(items):
        if isinstance(x, Mark): marks.setdefault(x.name, []).append(i)
    ins = {}
    pre = {0: [], 1: []}
    phase_start = [i for i, x in enumerate(items) if isinstance(x, str) and x.startswith('L_ph')]
    for ui, pos in enumerate(uses):
        x = items[pos]
        buf = STG + 4 * (ui % 2)
        x.reg = vr(buf, 4)
        back = (pos - uses[ui - 2]) % n
        cand = [back, min((pos - m) % n for m in marks['p2'])]
        if x.p1:
            lm = marks[('landed', x.s, x.k)][0]
            d = (pos - lm) % n
            if d > n // 2: d = 1
            cand.append(d)
        else:
            cand.append(min((pos - m) % n for m in marks['q2']))
        d = min(cand)
        at = (pos - d) % n
        rdi = f'ds_read_b128 {x.reg}, v{vL} offset:{SM[(x.s, x.k)][1] * 1024}'
        ins.setdefault(at, []).append(I(rdi, deps=[('ld', x.s, x.k)]))
        if not x.p1 and (pos - phase_start[x.s]) % n < d: pre[x.s].append(rdi)
    out = []
    for i, x in enumerate(items):
        if isinstance(x, Use):
            kind, idx = SM[(x.s, x.k)]
            out.append(x.fmt % (x.reg if kind == 'l' else treg(idx)))
        else:
            out.append(x)
        out += ins.get(i, [])
    return out, pre

def gen_attn(p, cfg):
    e = p.e
    D = cfg['D']; T1 = cfg['T1']
    items, pre = resolve(build_phase(0, cfg) + build_phase(1, cfg), cfg)
    def run(q):
        snaps = {}
        for x in items:
            if isinstance(x, Mark):
                if x.name == 'p2' and 'p2' not in snaps: snaps['p2'] = q.snapshot()
                continue
            q.e(x)
        q.flush(); q.e('s_branch L_ph0')
        snaps['end'] = q.snapshot()
        return snaps
    q = Prog(); s1 = run(q)
    q = Prog(); q.restore(s1['end']); s2 = run(q)
    assert s2['end'] == s1['end']
    p2v, p2l = s2['p2']
    assert all(t is not None and t[0] == 'ld' and t[1] == 0 for t, _ in p2v), p2v
    e('L_attn:')
    e('s_load_dwordx16 s[64:79], s[0:1], 0')
    e('s_load_dwordx8 s[80:87], s[0:1], 64')
    lane, i_, g, t0, t1 = 40, 41, 42, 43, 44
    e(f'v_lshrrev_b32 v{t0}, 6, v0'); e(f'v_and_b32 v{lane}, 63, v0')
    e(f'v_readfirstlane_b32 s{sW}, v{t0}')
    e(f'v_and_b32 v{i_}, 15, v0'); e(f'v_lshrrev_b32 v{g}, 4, v{lane}')
    e('s_mul_i32 s48, s96, 28'); e('s_add_u32 s48, s48, s97'); e('s_sub_u32 s48, s48, 4'); e('s_add_u32 s2, s48, 32')
    e('s_mul_i32 s49, s48, 4682'); e('s_lshr_b32 s49, s49, 16')
    e('s_mul_i32 s50, s49, 14'); e('s_sub_u32 s50, s48, s50')
    e('s_lshl_b32 s50, s50, 2'); e(f's_add_u32 s50, s50, s{sW}')
    e('s_mul_i32 s51, s50, 1198373'); e('s_add_u32 s52, s51, 1198373'); e('s_lshr_b32 s51, s51, 16'); e('s_lshr_b32 s52, s52, 16')
    e('s_lshl_b32 s53, s49, 21'); e('s_lshl_b32 s54, s51, 11'); e('s_add_u32 s53, s53, s54')
    e(f'v_lshrrev_b32 v{t0}, 2, v{i_}'); e(f'v_lshlrev_b32 v{t0}, 9, v{t0}'); e(f'v_lshl_add_u32 v{t0}, v{g}, 6, v{t0}')
    e(f'v_and_b32 v{t1}, 3, v{i_}'); e(f'v_lshl_add_u32 v{t0}, v{t1}, 4, v{t0}'); e(f'v_add_u32 v{vK}, s53, v{t0}')
    e(f's_mul_i32 s{sLds}, s{sW}, 40960'); e(f's_mov_b32 s{sBase}, 0')
    e(f's_mov_b32 s{KS+2}, 0x8000000'); e(f's_mov_b32 s{KS+3}, 0x20000'); e(f's_mov_b32 s{VS+2}, 0x8000000'); e(f's_mov_b32 s{VS+3}, 0x20000')
    e(f's_mov_b32 s{WS+2}, {WS_SIZE}'); e(f's_mov_b32 s{WS+3}, 0x20000'); e(f's_mov_b32 s{DBG+2}, 256'); e(f's_mov_b32 s{DBG+3}, 0x20000')
    PF = 56; sX, sR, sA, sB_ = 60, 61, 62, 63
    pq, pg, po, pd = 45, 46, 47, 52
    e(f's_mov_b32 s{sX}, s96'); e(f's_lshl_b32 s{sR}, s97, 2'); e(f's_add_u32 s{sR}, s{sR}, s{sW}'); e(f's_sub_u32 s{sR}, s{sR}, 16')
    e(f'v_lshlrev_b32 v{pd}, 4, v{lane}')
    if not cfg.get('nocpf'):
        e(f's_getpc_b64 s[{PF}:{PF+1}]'); e('L_pc:'); e(f's_mov_b32 s{PF+2}, L_codeend-L_pc'); e(f's_mov_b32 s{PF+3}, 0x20000'); e(f's_lshl_b32 s{sA}, s{sR}, 10')
        e(f'buffer_load_dwordx4 a[124:127], v{pd}, {srd(PF)}, s{sA} offen')
    e(f's_lshl_b32 s{sA}, s{sR}, 15'); e(f's_lshl_b32 s{sB_}, s{sX}, 10'); e(f's_add_u32 s{sA}, s{sA}, s{sB_}')
    e(f'v_add_u32 v{pq}, s{sA}, v{pd}')
    e(f's_mov_b32 s{PF+3}, 0x20000')
    ppol = cfg.get('ppol', '')
    pfn = [0]
    def pf(vo, so, off):
        r = 128 + 4 * pfn[0]; pfn[0] += 1
        return f'buffer_load_dwordx4 a[{r}:{r+3}], v{vo}, {srd(PF)}, {so} offen offset:{off} {ppol}'
    def pfs(ptr, size): return [f's_mov_b32 s{PF}, s{ptr}', f's_mov_b32 s{PF+1}, s{ptr+1}', f's_mov_b32 s{PF+2}, {size}']
    PQ = [pfs(70, 448 * 8192) + [pf(pq, 0, 0)]] + [[f's_movk_i32 s{sA}, {8192 * k}', pf(pq, f's{sA}', 0)] for k in (1, 2, 3)]
    PO = [pfs(72, 4096 * 896) + [pf(po, 0, 0)]] + [[pf(po, 0, 1024 * k)] for k in (1, 2, 3)]
    PG = []
    for ptr in (76, 78):
        PG += [pfs(ptr, 448 * 3584) + [f's_movk_i32 s{sA}, 7168', pf(pg, 0, 0)], [pf(pg, f's{sA}', 0)]]
    PDn = [pfs(80, 1792 * 896) + [pf(pd, 0, 0)], [pf(pd, 0, 1024)]]
    p.wait_all(vm=False)
    e(f's_mov_b32 s{KS}, s66'); e(f's_mov_b32 s{KS+1}, s67')
    PD = cfg.get('PD', D)
    seq = [load_items(0, k, cfg) for k in range(T1)]
    if not cfg.get('nopf'):
        k1, k2 = cfg.get('pfk1', 2), cfg.get('pfk2', 4)
        seq = PQ + seq[:k1] + PO + seq[k1:k2] + PG + PDn + seq[k2:]
    nfirst = min(PD, 4 + cfg.get('pfk1', 2))
    for it in seq[:nfirst]: e(it)
    e(f's_mov_b32 s{VS}, s68'); e(f's_mov_b32 s{VS+1}, s69'); e(f's_mov_b32 s{WS}, s86'); e(f's_mov_b32 s{WS+1}, s87')
    e(f's_mov_b32 s{DBG}, s84'); e(f's_mov_b32 s{DBG+1}, s85')
    e(f's_mul_i32 s{sA}, s{sX}, {512 * 896}'); e(f's_lshl_b32 s{sB_}, s{sR}, 12'); e(f's_add_u32 s{sA}, s{sA}, s{sB_}')
    e(f'v_add_u32 v{po}, s{sA}, v{pd}'); e(f'v_lshrrev_b32 v{t0}, 5, v{lane}')
    e(f's_mul_i32 s{sA}, s{sR}, {4 * 3584}'); e(f's_lshl_b32 s{sB_}, s{sX}, 7'); e(f's_add_u32 s{sA}, s{sA}, s{sB_}')
    e(f'v_mul_u32_u24 v{pg}, 3584, v{t0}'); e(f'v_bfe_u32 v{t0}, v{lane}, 3, 2'); e(f'v_lshl_add_u32 v{pg}, v{t0}, 10, v{pg}')
    e(f'v_and_b32 v{t0}, 7, v{lane}'); e(f'v_lshl_add_u32 v{pg}, v{t0}, 4, v{pg}'); e(f'v_add_u32 v{pg}, s{sA}, v{pg}')
    e(f's_mul_i32 s{sA}, s{sR}, 2341'); e(f's_lshr_b32 s{sA}, s{sA}, 16')
    e(f's_mul_i32 s{sB_}, s{sA}, 28'); e(f's_sub_u32 s{sB_}, s{sR}, s{sB_}'); e(f's_lshl_b32 s{sB_}, s{sB_}, 11')
    e(f's_lshl_b32 s{sA}, s{sA}, 3'); e(f's_add_u32 s{sA}, s{sA}, s{sX}'); e(f's_mul_i32 s{sA}, s{sA}, 57344'); e(f's_add_u32 s{sA}, s{sA}, s{sB_}')
    e(f'v_add_u32 v{pd}, s{sA}, v{pd}')
    if cfg.get('stamps'):
        e(f's_mov_b32 s{sStamp}, 1'); e(f'v_mov_b32 v{vSTAMP}, 0'); e(f'v_writelane_b32 v{vSTAMP}, s94, 0'); e(stamp_items(cfg))
    e(f'v_lshlrev_b32 v{t0}, 9, v{g}'); e(f'v_lshl_add_u32 v{t0}, v{i_}, 4, v{t0}'); e(f'v_add_u32 v{vV}, s53, v{t0}')
    e(f'v_lshlrev_b32 v{vL}, 4, v{lane}'); e(f'v_add_u32 v{vL}, s{sLds}, v{vL}')
    e('s_lshl_b32 s54, s49, 10'); e(f'v_lshlrev_b32 v{t0}, 7, v{g}'); e(f'v_lshl_add_u32 v{t0}, v{t1}, 4, v{t0}'); e(f'v_add_u32 v{vQ}, s54, v{t0}')
    e(f's_mul_i32 s54, s49, {OBH}'); e('s_lshr_b32 s55, s50, 2'); e('s_lshl_b32 s47, s55, 9'); e('s_add_u32 s47, s47, s54')
    e('s_lshl_b32 s55, s55, 7'); e('s_add_u32 s55, s55, s54'); e('s_add_u32 s55, s55, 7168')
    e(f'v_lshlrev_b32 v{t0}, 4, v{lane}'); e(f'v_add_u32 v{t0}, s47, v{t0}')
    e(f'v_mov_b32 v{t1}, s55'); e(f'v_cmp_gt_u32 vcc, 32, v{lane}'); e(f'v_cndmask_b32 v{t0}, v{t1}, v{t0}, vcc')
    e(f'v_mov_b32 v{t1}, 0x80000000'); e(f'v_cmp_gt_u32 vcc, 33, v{lane}'); e(f'v_cndmask_b32 v{vO}, v{t1}, v{t0}, vcc')
    e(f'v_and_b32 v{t0}, 1, v{i_}'); e(f'v_mov_b32 v{t1}, 0xffff'); e(f'v_lshlrev_b32 v{t0}, 4, v{t0}'); e(f'v_lshlrev_b32 v{t1}, v{t0}, v{t1}')
    e(f'v_bfe_u32 v{t0}, v{i_}, 1, 2')
    for r in range(4):
        e(f'v_cmp_eq_u32 vcc, {r}, v{t0}'); e(f'v_cndmask_b32 v{MASK + r}, 0, v{t1}, vcc')
    e('s_sub_u32 s52, s52, s51'); e('s_cmp_eq_u32 s52, 19')
    e(f's_cselect_b32 s{sLast}, 4096, {OOB}'); e(f's_cselect_b32 s{sBias}, 0, 0xff800000')
    e(f's_mov_b32 s{sQ1}, {QB0}'); e(f's_mov_b32 s{sQ2}, {OOB}'); e(f's_mov_b32 s{sO1}, {OOB}'); e(f's_mov_b32 s{sO2}, {OOB}')
    e(f's_mov_b32 s{sPh}, 0'); e(f's_mov_b32 s{sBud}, {cfg.get("budget", 100000)}'); e(f's_mov_b32 s{sSc}, {f32hex(math.log2(math.e) / 16)}')
    for k in range(nfirst, len(seq)):
        p.wait_vm(PD - 1)
        e(seq[k])
        if k == len(seq) - D - 3:
            e([f'v_mov_b32 v{TD}, 0', f's_lshl_b32 s{sCnt}, s96, 5', f'buffer_load_dword v{TC}, v{TD}, {srd(DBG)}, s{sCnt} offen sc1'])
    e([f'L_cc_r:', f'v_readfirstlane_b32 s{sLoc}, v{TC}', f's_getreg_b32 s{sA}, hwreg(HW_REG_XCC_ID, 0, 3)', f's_mul_i32 s{sB_}, s{sA}, s{sA}', f's_lshl_b32 s{sB_}, s{sB_}, 8',
       f's_add_u32 s{sA}, s{sA}, s{sB_}', f's_lshl_b32 s{sA}, s{sA}, 10', f's_add_u32 s{sA}, s{sA}, 4',
       f's_and_b32 s{sB_}, s{sLoc}, 63', f's_cmp_lt_u32 s{sB_}, 4', f's_cbranch_scc1 L_cc_s',
       f's_sub_u32 s{sLoc}, s{sLoc}, s{sA}'] + ([f's_mov_b32 s{sLoc}, 1'] if cfg.get('noloc') else []) +
      [f's_cmp_eq_u32 s{sLoc}, 0', f's_cselect_b32 s{sQ1}, {QB0 if cfg.get("noql") else QBL0}, {QB0}'])
    if cfg.get('nool'): e(f's_mov_b32 s{sLoc}, 1')
    p.wait_vm(len(p2v))
    p.flush(); e('s_branch L_p2_0')
    p.restore(s1['end'])
    run(p)
    for s in range(2):
        for lab, so in ((f'L_q1{s}', sQ1), (f'L_q2{s}', sQ2)):
            p.reset_queues()
            e(f'{lab}_s:')
            e(f's_sub_u32 s{sBud}, s{sBud}, 1'); e('s_cbranch_scc1 L_end')
            if cfg.get('slQ'): e(f's_sleep {cfg["slQ"]}')
            e(qloads(so)); p.wait_all(force=True)
            e(f'v_max_u32 v{TA}, v{Q}, v{Q + 4}'); e(f'v_cmp_eq_u32 vcc, -1, v{TA}'); e(f's_cbranch_vccnz {lab}_s')
            e(f's_branch {lab}_r')
    p.reset_queues()
    e(f'L_cc_s:')
    e(f's_sub_u32 s{sBud}, s{sBud}, 1'); e('s_cbranch_scc1 L_end')
    e(f'buffer_load_dword v{TC}, v{TD}, {srd(DBG)}, s{sCnt} offen sc1'); p.wait_all(force=True)
    e(f's_branch L_cc_r')
    p.reset_queues()
    for lab, st in ALT.items():
        e(f'{lab}_g:'); e(st); e('s_nop 1'); e(f's_branch {lab}')
    p.reset_queues()
    e('L_tail0:')
    e('s_nop 7')
    e(pre[1])
    if cfg.get('dT'): e(f's_sleep {cfg["dT"]}')
    e('s_branch L_q20_s')
    e('L_skip1:'); e('s_waitcnt lgkmcnt(0)'); e('s_nop 3'); e('s_branch L_np11')
    e('L_tail1:')
    if cfg.get('stamps'):
        e(f's_lshl_b32 s4, s2, 2'); e(f's_add_u32 s4, s4, s{sW}'); e('s_lshl_b32 s4, s4, 8'); e(f's_add_u32 s4, s4, {STAMP0}')
        e(f'v_subrev_u32 v{TA}, s{sLds}, v{vL}'); e(f'v_lshrrev_b32 v{TA}, 2, v{TA}')
        e(f'buffer_store_dword v{vSTAMP}, v{TA}, {srd(WS)}, s4 offen')
    e('s_branch L_end')
```

```python
from asmlib import *
from common import *

vOBd, vOBs, vXg, vXp, vYp, vQp, vOut, vLw, vLrx, vLro, vLrs, vLwh, vLrh, vRes, vChk = range(1, 16)
MASK = 16; OMASK = 20; R = 24; ST = 28; WW = 30; DEN = 31
G = 32; ACC = 64; AB = 80; T = 88
P = 92
vSTAMP = 95
NEGM = 88; RS = 89; T2 = 90; T3 = 91; WF = 90; vOBe = 94; OG = 72
vDq, vDo, vDg, vDd, vTq, vTo, vTg, vTa = 72, 73, 74, 75, 76, 77, 78, 79
RING = 36
AUX = 4 * RING * 1024
OBUF, XB_L, ONES, HZ, RES = 0, 1024, 2048, 3072, 4096
HBUF = HZ + 384
MIRR = 8192
WQ, WO, WS, DBG, WG, WU, WD, XS, OUT = 8, 12, 16, 20, 24, 28, 32, 36, 40
sF, sW, sC = 2, 3, 93
sOB, sXB, sYB, sQB, sRes, sOut, sL2, sDes, sTab, sTabH, sBud, sT, sRing, sT2, sB, sPre = range(44, 60)
sM7 = 60
sInc, sEmb, sTail = 90, 91, 92
sRet, sJob = 98, 99
sStamp = 62; sSt = 88

def srd(b): return f's[{b}:{b+3}]'
def frag(f): return vr(4 * f, 4, 'a') if f < 64 else vr(96 + 4 * (f - 64), 4)
def fragh(f, half): return vr(4 * f + 2 * half, 2, 'a') if f < 64 else vr(96 + 4 * (f - 64) + 2 * half, 2)
F_WQ = lambda s, t: 2 * t + s
F_WO = lambda pi, s, t: 28 + 4 * t + 2 * pi + s
F_WG = lambda t: 60 + 2 * t
F_WU = lambda t: 61 + 2 * t
F_WD = lambda k, s, t: 88 + 8 * t + 2 * k + s
MF = 'v_mfma_f32_16x16x32_bf16'
DPPALL = 'row_mask:0xf bank_mask:0xf'

def stamp(p, cfg):
    if not cfg.get('stamps'): return
    p.e(f's_memrealtime s[{sSt}:{sSt+1}]'); p.wait_all(vm=False)
    p.e(f's_mov_b32 m0, s{sStamp}')
    p.e(f'v_writelane_b32 v{vSTAMP}, s{sSt}, m0')
    p.e(f's_add_u32 s{sStamp}, s{sStamp}, 1')

NB = 9
def batch_list():
    L = []
    ks = [(half, gh) for half in range(2) for gh in range(2)]
    for i in range(7):
        L.append((WQ, vDq, [(64 * i + 16 * gh + 4 * half) * 8192 for half, gh in ks],
                  [(fragh(F_WQ(s, 2 * i + u), half), u * 4096 + half * 2048 + 8 * s, vTq) for u in range(2) for half in range(2) for s in range(2)]))
    for t in range(8):
        L.append((WO, vDo, [(32 * t + 16 * gh + 4 * half) * 896 for half, gh in ks],
                  [(fragh(F_WO(pi, s, t), half), half * 2048 + pi * 512 + 8 * s, vTo) for half in range(2) for pi in range(2) for s in range(2)]))
    for i in range(7):
        L.append((WG, vDg, [(64 * i + 16 * gh + 4 * half) * 3584 for half, gh in ks],
                  [(fragh((F_WU if m else F_WG)(2 * i + u), half), (2 * u + m) * 4096 + half * 2048, vTg) for u in range(2) for m in range(2) for half in range(2)]))
    for t in range(2):
        for lh in range(2):
            L.append((WD, vDd, [(32 * t + 16 * gh + 4 * half) * 896 + lh * 128 for half, gh in ks],
                      [(fragh(F_WD(2 * lh + sg, s, t), half), half * 2048 + sg * 512 + 8 * s, vTo) for half in range(2) for sg in range(2) for s in range(2)]))
    return L

def stats_side(src):
    a, b, s1, s2 = AB + 4, AB + 5, T2, T3
    o = []
    for k in range(4):
        o.append(f'v_lshlrev_b32 v{a}, 16, v{src+k}')
        o.append(f'v_and_b32 v{b}, 0xffff0000, v{src+k}')
        if k == 0:
            o.append(f'v_mul_f32 v{s2}, v{a}, v{a}')
            o.append(f'v_add_f32 v{s1}, v{a}, v{b}')
        else:
            o.append(f'v_fmac_f32 v{s2}, v{a}, v{a}')
            o.append(f'v_add_f32 v{s1}, v{s1}, v{a}')
            o.append(f'v_add_f32 v{s1}, v{s1}, v{b}')
        o.append(f'v_fmac_f32 v{s2}, v{b}, v{b}')
    o += [f'v_permlane16_swap_b32 v{s1}, v{s2}', f'v_add_f32 v{s1}, v{s1}, v{s2}',
          f'v_mov_b32 v{s2}, v{s1}', f'v_permlane32_swap_b32 v{s1}, v{s2}', f'v_add_f32 v{s1}, v{s1}, v{s2}',
          f'v_add_f32_dpp v{s1}, v{s1}, v{s1} quad_perm:[1,0,3,2] {DPPALL}',
          f'v_add_f32_dpp v{s1}, v{s1}, v{s1} quad_perm:[2,3,0,1] {DPPALL}',
          f'v_add_f32_dpp v{s1}, v{s1}, v{s1} row_half_mirror {DPPALL}',
          f'v_add_f32_dpp v{s1}, v{s1}, v{s1} row_mirror {DPPALL}',
          f'v_mul_f32 v{s1}, {f32hex(1.0/448)}, v{s1}',
          f'v_mov_b32 v{s2}, v{s1}', f'v_permlane16_swap_b32 v{s1}, v{s2}',
          f'v_fma_f32 v{s2}, -v{s1}, v{s1}, v{s2}',
          f'v_cvt_pk_bf16_f32 v{a}, v{s2}, v{s1}',
          f'v_lshlrev_b32 v{s2}, 16, v{a}',
          f'v_add_f32 v{s2}, {f32hex(1e-5)}, v{s2}',
          f'v_cvt_pk_bf16_f32 v{s2}, v{s2}, v{s2}',
          f'v_and_b32 v{s2}, 0xffff0000, v{s2}',
          f'v_sqrt_f32 v{s2}, v{s2}',
          f'v_and_b32 v{a}, 0xffff0000, v{a}',
          f'v_cvt_pk_bf16_f32 v{s2}, v{s2}, v{s2}',
          f'v_and_b32 v{s2}, 0xffff0000, v{s2}',
          f'v_rcp_f32 v{RS}, v{s2}',
          f'v_xor_b32 v{NEGM}, 0x80000000, v{a}']
    return o

def matvec14(p, mk):
    rd = lambda t: f'ds_read_b128 {vr(G + 4 * (t % 8), 4)}, v{vLrx} offset:{64 * t}'
    p.e(rd(0)); p.e(f'ds_read_b128 {vr(AB, 4)}, v{vLrs} offset:{XB_L}')
    for t in range(1, 8): p.e(rd(t))
    main = []
    for t in range(14):
        main += mk(t, vr(G + 4 * (t % 8), 4))
        if t + 8 < 14: main.append(rd(t + 8))
    return main

def retry(p, lab):
    p.e(f'v_cmp_eq_u32 vcc, -1, v{vChk}')
    p.e(f's_cbranch_vccnz {lab}_s')

def slow(p, lab, mask=False, sl=0):
    p.e(f'{lab}_s:')
    p.e(f's_sub_u32 s{sBud}, s{sBud}, 1')
    p.e('s_cbranch_scc1 L_end')
    if mask: p.e('s_mov_b64 exec, vcc')
    p.e(f's_sleep {sl}' if sl else 's_nop 7')
    p.e(f's_branch {lab}')

def gen_chain(p, cfg):
    e = p.e
    e('L_chain:')
    e('s_load_dwordx16 s[64:79], s[0:1], 0')
    e('s_load_dwordx8 s[80:87], s[0:1], 64')
    lane, n, g, t0, t1, t2 = 32, 33, 34, 35, 36, 37
    OOBV = 38
    e(f'v_and_b32 v{lane}, 63, v0'); e(f'v_lshrrev_b32 v{t0}, 6, v0')
    e(f'v_readfirstlane_b32 s{sW}, v{t0}')
    e(f'v_and_b32 v{n}, 15, v0'); e(f'v_lshrrev_b32 v{g}, 4, v{lane}')
    e(f'v_mov_b32 v{OOBV}, 0x80000000')
    e(f's_lshl_b32 s{sC}, s96, 2'); e(f's_add_u32 s{sC}, s{sC}, s97')
    e(f's_lshr_b32 s4, s{sC}, 1')
    e(f's_and_b32 s5, s{sC}, 1'); e(f's_lshl_b32 s5, s5, 2'); e(f's_add_u32 s5, s5, s{sW}')
    e(f's_lshl_b32 s{sRing}, s{sW}, 12')
    if cfg.get('stamps'):
        e(f's_mov_b32 s{sStamp}, 0'); e(f'v_mov_b32 v{vSTAMP}, 0')
    r8, cs, rq = t0, t1, t2
    e(f'v_bfe_u32 v{r8}, v{lane}, 2, 3'); e(f'v_and_b32 v{cs}, 3, v{lane}'); e(f'v_lshrrev_b32 v{rq}, 5, v{lane}')
    e(f'v_lshl_add_u32 v{cs}, v{rq}, 2, v{cs}'); e(f'v_lshlrev_b32 v{cs}, 4, v{cs}')
    e(f'v_and_b32 v{rq}, 4, v{r8}'); e(f'v_add_u32 v{rq}, v{rq}, v{r8}')
    e(f's_lshr_b32 s6, s{sW}, 1'); e(f's_and_b32 s7, s{sW}, 1')
    e(f's_lshl_b32 s{sT}, s{sC}, 8'); e(f's_lshl_b32 s{sT2}, s6, 7'); e(f's_add_u32 s{sT}, s{sT}, s{sT2}')
    e(f's_lshl_b32 s{sT2}, s7, 18'); e(f's_add_u32 s{sT}, s{sT}, s{sT2}')
    e(f'v_lshl_add_u32 v{vDq}, v{rq}, 13, v{cs}'); e(f'v_add_u32 v{vDq}, s{sT}, v{vDq}')
    p.wait_all()
    def mk(b, ptr, size):
        e(f's_mov_b32 s{b}, s{ptr}'); e(f's_mov_b32 s{b+1}, s{ptr+1}'); e(f's_mov_b32 s{b+2}, {size}'); e(f's_mov_b32 s{b+3}, 0x20000')
    mk(WQ, 70, 448 * 8192)
    bl = batch_list()
    pol = cfg.get('wpol', 'nt')
    def dma(i):
        if i >= len(bl): return
        s, vo, so, _ = bl[i]
        for k in range(4):
            e(f's_add_u32 m0, s{sRing}, {(i % NB) * 16384 + k * 1024}')
            e(f's_mov_b32 s{sT}, {so[k]}')
            e(f'buffer_load_dwordx4 v{vo}, {srd(s)}, s{sT} offen {pol} lds', tag=('dma', i))
    def consume(i, refill=True):
        e(f'v_add_u32 v{vTa}, {(i % NB) * 16384}, v{bl[i][3][0][2]}')
        p.wait(('dma', i)); p.wait_all(vm=False)
        e('s_barrier')
        for d, off, a in bl[i][3]:
            e(f'ds_read_b64_tr_b16 {d}, v{vTa} offset:{off}')
        if i > 0 and refill: dma(i - 1 + NB)
        if cfg.get('istamp'): stamp(p, cfg)
    if cfg.get('stamps'): e(f's_mov_b32 s{sStamp}, 1'); e(f'v_writelane_b32 v{vSTAMP}, s94, 0')
    stamp(p, cfg)
    for i in range(2): dma(i)
    mk(WS, 86, WS_SIZE)
    if not cfg.get('noclear'):
        for k in range(4): e(f'v_mov_b32 v{48 + k}, -1')
        e(f'v_lshrrev_b32 v52, 3, v{lane}'); e(f'v_and_b32 v53, 7, v{lane}'); e('v_lshlrev_b32 v53, 4, v53')
        e('v_lshl_add_u32 v54, v52, 14, v53'); e('v_lshl_add_u32 v55, v52, 15, v53')
        e(f's_lshl_b32 s{sT}, s{sC}, 9'); e(f's_lshl_b32 s{sT2}, s{sW}, 7'); e(f's_add_u32 s{sT}, s{sT}, s{sT2}')
        assert QB0 == 0 and QBJ == 16384 and XBJ == 16384 and YBJ == 32768
        e(f'buffer_store_dwordx4 v[48:51], v54, {srd(WS)}, s{sT} offen sc1')
        e(f's_add_u32 s{sT2}, s{sT}, {QBL0}')
        e(f'buffer_store_dwordx4 v[48:51], v54, {srd(WS)}, s{sT2} offen')
        e(f's_add_u32 s{sT2}, s{sT}, {XB0}')
        e(f'buffer_store_dwordx4 v[48:51], v54, {srd(WS)}, s{sT2} offen sc1')
        e(f's_lshl_b32 s{sT}, s{sF}, 10'); e(f's_lshl_b32 s{sT2}, s{sW}, 8'); e(f's_add_u32 s{sT}, s{sT}, s{sT2}'); e(f's_add_u32 s{sT}, s{sT}, {YB0}')
        e(f'buffer_store_dwordx4 v[48:51], v55, {srd(WS)}, s{sT} offen sc1')
        e(f'buffer_store_dwordx4 v[48:51], v55, {srd(WS)}, s{sT} offen offset:128 sc1')
        e(f's_mul_i32 s{sT}, s4, {OBH}'); e(f's_lshl_b32 s{sT2}, s5, 10'); e(f's_add_u32 s{sT}, s{sT}, s{sT2}')
        e('s_cmp_eq_u32 s5, 7'); e(f's_cselect_b32 s{sT2}, 7, 4')
        e(f'v_lshlrev_b32 v52, s{sT2}, v{lane}'); e(f'v_cmp_gt_u32 vcc, 0x800, v52'); e(f'v_add_u32 v52, s{sT}, v52')
        e(f'v_cndmask_b32 v{vChk}, v{OOBV}, v52, vcc')
        e(f's_mov_b32 s{sT}, {OB0}')
        e(f'buffer_store_dwordx4 v[48:51], v{vChk}, {srd(WS)}, s{sT} offen sc1', tag='clr')
    for i in range(2, 7): dma(i)
    if cfg.get('istamp'): stamp(p, cfg)
    mk(WO, 72, 4096 * 896); mk(DBG, 84, 256)
    e('s_cmp_eq_u32 s7, 0'); e(f's_cselect_b32 s{WG}, s76, s78'); e(f's_cselect_b32 s{WG+1}, s77, s79')
    e(f's_mov_b32 s{WG+2}, {448 * 3584}'); e(f's_mov_b32 s{WG+3}, 0x20000')
    mk(WD, 80, 1792 * 896); mk(XS, 64, 3584); mk(OUT, 82, 3584)
    e(f's_mul_i32 s{sT}, s{sF}, {64 * 896}'); e(f's_lshl_b32 s{sT2}, s{sW}, 8'); e(f's_add_u32 s{sT}, s{sT}, s{sT2}')
    e(f'v_mul_u32_u24 v{vDd}, 896, v{rq}'); e(f'v_add3_u32 v{vDd}, v{vDd}, v{cs}, s{sT}')
    e(f's_mul_i32 s{sT}, s4, {256 * 896}'); e(f's_lshl_b32 s{sT2}, s5, 7'); e(f's_add_u32 s{sT}, s{sT}, s{sT2}')
    e('s_cmp_eq_u32 s5, 7'); e(f's_cselect_b32 s{sT}, 0x80000000, s{sT}')
    e(f'v_mul_u32_u24 v{vDo}, 896, v{rq}'); e(f'v_add3_u32 v{vDo}, v{vDo}, v{cs}, s{sT}')
    e(f's_lshl_b32 s{sT}, s{sF}, 7'); e(f's_mul_i32 s{sT2}, s6, {32 * 3584}'); e(f's_add_u32 s{sT}, s{sT}, s{sT2}')
    e(f'v_mul_u32_u24 v{vDg}, 3584, v{rq}'); e(f'v_add3_u32 v{vDg}, v{vDg}, v{cs}, s{sT}')
    e(f'v_lshrrev_b32 v{t1}, 5, v{lane}'); e(f'v_lshlrev_b32 v{t1}, 10, v{t1}')
    e(f'v_and_b32 v{t2}, 31, v{lane}'); e(f'v_lshl_add_u32 v{t2}, v{t2}, 4, v{t1}')
    e(f'v_add_u32 v{vTo}, s{sRing}, v{t2}')
    e(f's_lshl_b32 s{sT}, s6, 13'); e(f's_lshl_b32 s{sT2}, s7, 9'); e(f's_add_u32 s{sT}, s{sT}, s{sT2}'); e(f'v_add_u32 v{vTq}, s{sT}, v{t2}')
    e(f'v_lshl_add_u32 v{t1}, v{r8}, 6, v{t1}'); e(f'v_and_b32 v{t2}, 3, v{lane}'); e(f'v_lshl_add_u32 v{t1}, v{t2}, 3, v{t1}')
    e(f's_lshl_b32 s{sT}, s6, 9'); e(f's_lshl_b32 s{sT2}, s7, 5'); e(f's_add_u32 s{sT}, s{sT}, s{sT2}'); e(f'v_add_u32 v{vTg}, s{sT}, v{t1}')
    e(f's_lshl_b32 s6, s{sW}, 8')
    e(f'v_lshlrev_b32 v{t0}, 4, v{n}'); e(f'v_add_u32 v{t0}, s6, v{t0}')
    e(f'v_and_b32 v{t1}, 1, v{g}'); e(f'v_lshl_add_u32 v{t1}, v{t1}, 3, v{t0}')
    e(f'v_cmp_gt_u32 vcc, 896, v{t0}'); e(f'v_cmp_gt_u32 s[6:7], 2, v{g}')
    e(f'v_lshl_add_u32 v{t2}, v{g}, 10, v{t0}')
    e(f'v_cndmask_b32 v{vXg}, v{OOBV}, v{t2}, vcc')
    e(f'v_cndmask_b32 v{vOut}, v{OOBV}, v{t1}, vcc'); e(f'v_cndmask_b32 v{vOut}, v{OOBV}, v{vOut}, s[6:7]')
    for b in range(4):
        e(f'buffer_load_dwordx2 {vr(40 + 2 * b, 2)}, v{vOut}, {srd(XS)}, 0 offen offset:{b * 896}')
    e(f'v_add_u32 v{vLw}, {AUX}, v{t1}'); e(f'v_add_u32 v{t2}, {AUX + MIRR}, v{t1}')
    e(f'v_cndmask_b32 v{vLw}, v{t2}, v{vLw}, s[6:7]')
    e(f'v_lshrrev_b32 v{t0}, 2, v{n}'); e(f'v_lshlrev_b32 v{t1}, 4, v{g}'); e(f'v_lshl_add_u32 v{t1}, v{t0}, 6, v{t1}')
    e(f'v_and_b32 v{t2}, 3, v{n}'); e(f'v_cmp_eq_u32 vcc, 0, v{t2}'); e(f'v_cndmask_b32 v{t1}, v{OOBV}, v{t1}, vcc')
    e(f's_lshl_b32 s6, s{sW}, 8'); e(f'v_add_u32 v{t2}, s6, v{t1}')
    e(f'v_cmp_gt_u32 vcc, 896, v{t2}'); e(f's_lshl_b32 s6, s{sF}, 10'); e(f'v_add_u32 v{t2}, s6, v{t2}')
    e(f'v_cndmask_b32 v{vYp}, v{OOBV}, v{t2}, vcc')
    e(f's_lshl_b32 s6, s4, 10'); e('s_lshl_b32 s7, s5, 7'); e('s_add_u32 s6, s6, s7')
    e(f'v_add_u32 v{t2}, s6, v{t1}')
    e(f'v_cmp_gt_u32 vcc, 64, v{t1}'); e(f'v_cndmask_b32 v{vQp}, v{OOBV}, v{t2}, vcc')
    e('s_cmp_eq_u32 s5, 7'); e('s_cselect_b32 s7, 0, 128')
    e(f'v_cmp_gt_u32 vcc, s7, v{t1}'); e(f'v_cndmask_b32 v{vXp}, v{OOBV}, v{t2}, vcc')
    e(f's_lshr_b32 s6, s{sW}, 1'); e('s_mul_i32 s6, s6, 7'); e(f's_mul_i32 s7, s4, {OBH}')
    e(f's_and_b32 s{sT}, s{sW}, 1'); e(f's_lshl_b32 s{sT}, s{sT}, 8'); e(f's_add_u32 s{sT}, s{sT}, s7')
    e(f'v_add_u32 v{t0}, s6, v{g}'); e(f'v_lshlrev_b32 v{t0}, 9, v{t0}'); e(f'v_lshl_add_u32 v{t0}, v{n}, 4, v{t0}'); e(f'v_add_u32 v{vOBd}, s{sT}, v{t0}')
    e(f'v_cmp_gt_u32 vcc, 3, v{g}'); e(f'v_cndmask_b32 v{vOBe}, v{OOBV}, v{vOBd}, vcc')
    e(f'v_and_b32 v{t0}, 1, v{n}'); e(f'v_lshl_add_u32 v{t0}, v{t0}, 2, v{g}'); e(f'v_min_u32 v{t0}, 6, v{t0}')
    e(f's_sub_u32 s{sT}, 7, s6')
    e(f'v_mov_b32 v{t1}, s6'); e(f'v_mov_b32 v{t2}, s{sT}'); e(f'v_and_b32 v{vOBs}, 2, v{n}'); e(f'v_cmp_eq_u32 vcc, 0, v{vOBs}'); e(f'v_cndmask_b32 v{t1}, v{t2}, v{t1}, vcc')
    e(f'v_add_u32 v{t0}, v{t0}, v{t1}'); e(f'v_lshlrev_b32 v{t0}, 7, v{t0}'); e('s_add_u32 s7, s7, 7168'); e(f'v_add_u32 v{vOBs}, s7, v{t0}')
    e(f'v_lshlrev_b32 v{t0}, 4, v{g}'); e(f'v_and_b32 v{t1}, 1, v{n}')
    e(f'v_mul_u32_u24 v{t2}, {ONES + 128 - XB_L}, v{t1}'); e(f'v_add_u32 v{vLrx}, {AUX + XB_L}, v{t0}'); e(f'v_add_u32 v{vLrx}, v{vLrx}, v{t2}')
    e(f'v_lshl_add_u32 v{vLro}, v{t1}, 9, v{t0}'); e(f'v_add_u32 v{vLro}, {AUX + OBUF}, v{vLro}')
    e(f'v_lshlrev_b32 v{vLrs}, 4, v{lane}'); e(f'v_add_u32 v{vLrs}, {AUX}, v{vLrs}')
    e(f's_lshl_b32 s6, s{sW}, 5'); e(f's_add_u32 s6, s6, {AUX + HBUF}'); e(f'v_lshlrev_b32 v{vLwh}, 1, v{n}'); e(f'v_add_u32 v{vLwh}, s6, v{vLwh}')
    e(f'v_lshrrev_b32 v{t1}, 2, v{n}'); e(f'v_lshlrev_b32 v{t1}, 7, v{t1}'); e(f'v_add_u32 v{vLrh}, {AUX + HBUF}, v{t0}'); e(f'v_sub_u32 v{vLrh}, v{vLrh}, v{t1}')
    e(f'v_and_b32 v{t0}, 1, v{n}'); e(f'v_mov_b32 v{t1}, 0xffff'); e(f'v_lshlrev_b32 v{t0}, 4, v{t0}'); e(f'v_lshlrev_b32 v{t1}, v{t0}, v{t1}')
    e(f'v_bfe_u32 v{t0}, v{n}, 1, 2')
    for r in range(4):
        e(f'v_cmp_eq_u32 vcc, {r}, v{t0}'); e(f'v_cndmask_b32 v{MASK + r}, 0, v{t1}, vcc'); e(f'v_and_b32 v{OMASK + r}, 0x3f803f80, v{MASK + r}')
    e(f's_getreg_b32 s{sT}, hwreg(HW_REG_XCC_ID, 0, 3)'); e(f's_mul_i32 s{sT2}, s{sT}, s{sT}'); e(f's_lshl_b32 s{sT2}, s{sT2}, 8'); e(f's_add_u32 s{sT}, s{sT}, s{sT2}')
    e(f's_lshl_b32 s{sT}, s{sT}, 8'); e(f's_add_u32 s{sInc}, s{sT}, 1')
    e(f's_mov_b32 s{sM7}, -1'); e(f's_mov_b32 s{sM7+1}, 0x5555ffff')
    e(f's_mov_b32 s{sPre}, 0'); e(f's_mov_b32 s{sBud}, {cfg.get("budget", 100000)}'); seq = [12, 15] if cfg.get('istamp') else [12, 0, 10, 11, 1, 4, 2, 5, 3, 6, 7, 15]
    tab = sum(v << (4 * i) for i, v in enumerate(seq))
    tab2 = sum(v << (4 * i) for i, v in enumerate([12, 0, 10, 11, 1, 2, 3, 7, 13, 15]))
    e(f's_mov_b32 s{sTab}, {tab & 0xffffffff}'); e(f's_mov_b32 s{sTab+1}, {tab >> 32}')
    e(f's_cmp_ge_u32 s{sF}, 28'); e(f's_cmov_b32 s{sTab}, {tab2 & 0xffffffff}'); e(f's_cmov_b32 s{sTab+1}, {tab2 >> 32}')
    for k in range(4): e(f'v_mov_b32 v{52 + k}, 0x3f803f80'); e(f'v_mov_b32 v{56 + k}, 0')
    e(f'ds_write_b128 v{vLrs}, v[52:55] offset:{ONES}'); e(f'ds_write_b128 v{vLrs}, v[56:59] offset:{HZ}')
    early = cfg.get('early', 0)
    for i in range(7, 7 + early): dma(i)
    if cfg.get('istamp'): stamp(p, cfg)
    for i in range(7): consume(i, refill=False)
    for b in range(4):
        e(f'ds_write_b64 v{vLw}, {vr(40 + 2 * b, 2)} offset:{RES + b * 1024}')
    p.wait('clr')
    p.wait_all(vm=False)
    e('s_barrier')
    if not cfg.get('noclear'):
        e(f's_cmp_lg_u32 s{sW}, 0'); e('s_cbranch_scc1 L_c_noat')
        e(f'v_mov_b32 v{t0}, s{sInc}'); e(f'v_cmp_eq_u32 vcc, 0, v{lane}'); e(f'v_cndmask_b32 v{t1}, v{OOBV}, v{lane}, vcc')
        e(f's_lshl_b32 s{sT}, s96, 5')
        e(f'buffer_atomic_add v{t0}, v{t1}, {srd(DBG)}, s{sT} offen sc1', nocount=True)
        e('L_c_noat:')
    stamp(p, cfg)
    snap_stage = p.snapshot()
    e(f's_mov_b32 s{sB}, 0')
    p.flush(); e('s_branch L_initjob')
    e('L_stage2:')
    p.restore(snap_stage)
    if not cfg.get('noclear'):
        for k in range(4): e(f'v_mov_b32 v{48 + k}, -1')
        for j in range(1, 8):
            e(f's_mov_b32 s{sT}, {OB0 + j * OBJ}')
            e(f'buffer_store_dwordx4 v[48:51], v{vChk}, {srd(WS)}, s{sT} offen sc1')
    for i in range(7 + early, 6 + NB): dma(i)
    for i in range(7, len(bl)):
        if i == 15:
            e(f's_cmp_lt_u32 s{sF}, 28'); e('s_cbranch_scc1 L_st_go')
            e('s_waitcnt vmcnt(0) lgkmcnt(0)'); e('s_branch L_st_done'); e('L_st_go:')
        consume(i)
    p.wait_all()
    e('L_st_done:')
    stamp(p, cfg)
    e(f's_mov_b32 s{sB}, 1')
    e('s_branch L_initjob')
    e('L_nextb:'); e('s_barrier')
    e('L_next:')
    p.reset_queues()
    e(f's_and_b32 s{sT}, s{sTab}, 15'); e(f's_lshr_b64 s[{sTab}:{sTab+1}], s[{sTab}:{sTab+1}], 4')
    e(f's_and_b32 s{sB}, s{sT}, 3')
    e(f's_cmp_lt_u32 s{sT}, 8'); e('s_cbranch_scc1 L_real')
    e(f's_cmp_eq_u32 s{sT}, 15'); e('s_cbranch_scc1 L_cend')
    e(f's_cmp_eq_u32 s{sT}, 12'); e('s_cbranch_scc1 L_stage2')
    e(f's_cmp_eq_u32 s{sT}, 13'); e('s_cbranch_scc1 L_fin')
    e('L_initjob:')
    e(f's_lshl_b32 s{sRes}, s{sB}, 10'); e(f's_add_u32 s{sRes}, s{sRes}, {RES}')
    e(f's_mul_i32 s{sQB}, s{sB}, {QBJ}')
    if QB0: e(f's_add_u32 s{sQB}, s{sQB}, {QB0}')
    e(f'v_add_u32 v{vRes}, s{sRes}, v{vLw}')
    e(f'ds_read_b64 {vr(P, 2)}, v{vRes}')
    e('s_barrier')
    p.wait_all(vm=False)
    e('s_branch L_x2')
    e('L_real:')
    e(f's_cmp_lg_u32 s{sT}, 0'); e('s_cbranch_scc1 L_dec')
    e('L_cnt:')
    e(f'v_and_b32 v{T}, 7, v0'); e(f'v_lshlrev_b32 v{T}, 5, v{T}')
    e(f'buffer_load_dword v{G}, v{T}, {srd(DBG)}, 0 offen sc1')
    e(f'v_and_b32 v{T}, 63, v{G}')
    e(f'v_cmp_gt_u32 vcc, 4, v{T}')
    e('s_cbranch_vccnz L_cnt_s')
    e('L_dec:')
    e(f's_lshr_b32 s{sL2}, s{sT}, 2')
    e(f's_lshr_b32 s{sTail}, 0xc8, s{sT}'); e(f's_and_b32 s{sTail}, s{sTail}, 1')
    e(f's_lshr_b32 s{sEmb}, 0x0e, s{sT}'); e(f's_and_b32 s{sEmb}, s{sEmb}, 1')
    e(f's_mov_b32 s{sRet}, 0'); e(f's_mov_b32 s{sJob}, s{sT}')
    e(f's_mul_i32 s{sOB}, s{sT}, {OBJ}'); e(f's_add_u32 s{sOB}, s{sOB}, {OB0}')
    e(f's_mul_i32 s{sXB}, s{sT}, {XBJ}'); e(f's_add_u32 s{sXB}, s{sXB}, {XB0}')
    e(f's_mul_i32 s{sYB}, s{sT}, {YBJ}'); e(f's_add_u32 s{sYB}, s{sYB}, {YB0}')
    e(f's_mul_i32 s{sQB}, s{sB}, {QBJ}'); e(f's_add_u32 s{sQB}, s{sQB}, {QB0 + 4 * QBJ}')
    e(f's_lshl_b32 s{sRes}, s{sB}, 10'); e(f's_add_u32 s{sRes}, s{sRes}, {RES}')
    e(f's_mul_i32 s{sOut}, s{sB}, 896')
    e(f's_cmp_ge_u32 s{sF}, 28'); e(f's_cselect_b32 s{sDes}, s{sL2}, 0')
    e('L_job:')
    e(f'v_add_u32 v{vRes}, s{sRes}, v{vLw}')
    e(f'ds_read_b64 {vr(P, 2)}, v{vRes}')
    def unpack():
        return [f'v_lshlrev_b32 v{R}, 16, v{P}', f'v_and_b32 v{R+1}, 0xffff0000, v{P}',
                f'v_lshlrev_b32 v{R+2}, 16, v{P+1}', f'v_and_b32 v{R+3}, 0xffff0000, v{P+1}']
    e(unpack())
    e(f's_cmp_eq_u32 s{sPre}, 2'); e('s_cbranch_scc1 L_xsa')
    stamp(p, cfg)
    e(f's_bitcmp1_b32 0x70, s{sJob}'); e('s_cbranch_scc1 L_xsk')
    if cfg.get('qrecl'):
        e(f's_cmp_lg_u32 s{sL2}, 0'); e('s_cbranch_scc1 L_nqr')
        for k in range(4): e(f'v_mov_b32 v{AB + k}, -1')
        e(f's_add_u32 s{sT}, s{sQB}, {QBL0 - QB0}')
        e(f'buffer_store_dwordx4 {vr(AB, 4)}, v{vQp}, {srd(WS)}, s{sT} offen', nocount=True)
        p.flush(); e('L_nqr:')
    e(f's_cmp_lg_u32 s{sPre}, 0'); e(f's_mov_b32 s{sPre}, 0'); e('s_waitcnt vmcnt(1)'); e('s_cbranch_scc1 L_s1b')
    def obloads(so):
        e(f'buffer_load_dwordx2 {vr(ST, 2)}, v{vOBs}, {srd(WS)}, s{so} offen sc1')
        e(f'buffer_load_dwordx4 {vr(OG, 4)}, v{vOBd}, {srd(WS)}, s{so} offen sc1')
        e(f'buffer_load_dwordx4 {vr(OG + 4, 4)}, v{vOBe}, {srd(WS)}, s{so} offen offset:2048 sc1')
    e('L_s1:')
    obloads(sOB)
    if cfg.get('mask', 1): e('s_mov_b64 exec, -1')
    p.wait_all(lg=False)
    e('L_s1b:')
    m, t = T, T + 1
    e(f'v_max_f32_dpp v{m}, v{ST}, v{ST} quad_perm:[1,0,3,2] {DPPALL}')
    e(f'v_max_f32_dpp v{m}, v{m}, v{m} quad_perm:[2,3,0,1] {DPPALL}')
    e(f'v_mov_b32 v{t}, v{m}'); e(f'v_permlane16_swap_b32 v{m}, v{t}'); e(f'v_max_f32 v{m}, v{m}, v{t}')
    e(f'v_mov_b32 v{t}, v{m}'); e(f'v_permlane32_swap_b32 v{m}, v{t}'); e(f'v_max_f32 v{m}, v{m}, v{t}')
    e(f'v_sub_f32 v{WF}, v{ST}, v{m}'); e(f'v_exp_f32 v{WF}, v{WF}')
    e(f'v_cvt_pk_bf16_f32 v{WW}, v{WF}, v{WF}')
    ands = lambda L: [f'v_and_b32_dpp v{AB + 4 * L + r}, v{WW}, v{MASK + r} quad_perm:[{L},{L},{L},{L}] {DPPALL}' for r in range(4)]
    e(ands(0)); e(ands(1)[:2])
    e(f'{MF} {vr(ACC, 4)}, {vr(AB, 4)}, {vr(OG, 4)}, 0')
    e(ands(1)[2:]); e(f'v_max3_u32 v{vChk}, v{ST}, v{OG}, v{OG+4}')
    e(f'{MF} {vr(ACC, 4)}, {vr(AB + 4, 4)}, {vr(OG + 4, 4)}, {vr(ACC, 4)}')
    retry(p, 'L_s1')
    e(f'v_mul_f32 v{DEN}, v{WF}, v{ST+1}'); e(f'v_cndmask_b32 v{DEN}, 0, v{DEN}, s[{sM7}:{sM7+1}]')
    e(f'v_cvt_pk_bf16_f32 v{P}, v{ACC}, v{ACC+1}'); e(f'v_cvt_pk_bf16_f32 v{P+1}, v{ACC+2}, v{ACC+3}')
    e(f'ds_write_b64 v{vLw}, {vr(P, 2)} offset:{OBUF}')
    p.wait_all(vm=False); e('s_barrier')
    stamp(p, cfg)
    for tt in range(8): e(f'ds_read_b128 {vr(G + 4 * tt, 4)}, v{vLro} offset:{64 * tt}')
    acc = lambda pi, s: ACC + 4 * (2 * s + pi)
    mf = lambda pi, s, tt: f'{MF} {vr(acc(pi, s), 4)}, {frag(F_WO(pi, s, tt))}, {vr(G + 4 * tt, 4)}, {"0" if tt == 0 else vr(acc(pi, s), 4)}'
    add = lambda pi, s: [f'v_add_f32_dpp v{AB + 4 * s + r}, v{acc(pi, s) + r}, v{acc(pi, s) + r} quad_perm:[1,0,3,2] row_mask:0xf bank_mask:{"0xf" if pi == 0 else "0x2"}' for r in range(4)]
    fin = lambda s: [f'v_mul_f32 v{AB + 4 * s + r}, v{DEN}, v{AB + 4 * s + r}' for r in range(4)] + \
                    [f'v_cvt_pk_bf16_f32 v{AB + 2 * s}, v{AB + 4 * s}, v{AB + 4 * s + 1}', f'v_cvt_pk_bf16_f32 v{AB + 2 * s + 1}, v{AB + 4 * s + 2}, v{AB + 4 * s + 3}']
    d = DEN
    den = [f'v_add_f32_dpp v{d}, v{d}, v{d} quad_perm:[1,0,3,2] {DPPALL}', f'v_add_f32_dpp v{d}, v{d}, v{d} quad_perm:[2,3,0,1] {DPPALL}',
           f'v_mov_b32 v{t}, v{d}', f'v_permlane16_swap_b32 v{d}, v{t}', f'v_add_f32 v{d}, v{d}, v{t}',
           f'v_mov_b32 v{t}, v{d}', f'v_permlane32_swap_b32 v{d}, v{t}', f'v_add_f32 v{d}, v{d}, v{t}', f'v_rcp_f32 v{d}, v{d}']
    e(weave([mf(pi, 0, tt) for tt in range(8) for pi in range(2)], den, per=1))
    e(weave([mf(0, 1, tt) for tt in range(8)], add(0, 0) + add(1, 0), per=2, start=4))
    e(weave([mf(1, 1, tt) for tt in range(8)], fin(0) + add(0, 1), per=2, start=1))
    e(f's_cmp_lg_u32 s{sDes}, 0')
    e(add(1, 1)); e(fin(1))
    e(f'buffer_store_dwordx4 {vr(AB, 4)}, v{vXp}, {srd(WS)}, s{sXB} offen sc1')
    e('s_cbranch_scc1 L_nextb')
    stamp(p, cfg)
    e(f's_cmp_eq_u32 s{sRet}, 1'); e('s_cbranch_scc1 L_ys')
    e(f's_cmp_eq_u32 s{sRet}, 2'); e('s_cbranch_scc1 L_ysp')
    e('L_xsa:')
    def gsum(lab, base, nl, dI, dL):
        if cfg.get('ack', 1): p.wait_all(lg=False, force=True)
        if dI: e(f's_sleep {dI}')
        if dL > dI:
            e(f's_cmp_lg_u32 s{sTail}, 0'); e(f's_cbranch_scc1 {lab}'); e(f's_sleep {dL - dI}')
        e(f'{lab}:')
        for L in range(nl):
            so = base
            if L: e(f's_add_u32 s{sT}, s{base}, {4096 * L}'); so = sT
            e(f'buffer_load_dwordx4 {vr(G + 4 * L, 4)}, v{vXg}, {srd(WS)}, s{so} offen sc1')
        if cfg.get('mask', 1): e('s_mov_b64 exec, -1')
        for L in range(nl):
            e(f'{MF} {vr(ACC, 4)}, {vr(OMASK, 4)}, {vr(G + 4 * L, 4)}, {vr(R, 4) if L == 0 else vr(ACC, 4)}')
            if L == 1: e(f'v_max_u32 v{vChk}, v{G}, v{G+4}')
            elif L > 1: e(f'v_max_u32 v{vChk}, v{vChk}, v{G + 4 * L}')
        retry(p, lab)
        e(f'v_cvt_pk_bf16_f32 v{P}, v{ACC}, v{ACC+1}'); e(f'v_cvt_pk_bf16_f32 v{P+1}, v{ACC+2}, v{ACC+3}')
    gsum('L_xs', sXB, 4, cfg.get('dXI', 0), cfg.get('dXL', 0))
    e(f'ds_write_b64 v{vLw}, {vr(P, 2)} offset:{XB_L}')
    e(unpack())
    e(f's_cmp_eq_u32 s{sEmb}, 0'); e('s_cbranch_scc1 L_nemb')
    e(f's_add_u32 s{sOB}, s{sOB}, {3 * OBJ}'); e(f's_add_u32 s{sXB}, s{sXB}, {3 * XBJ}')
    sn = p.snapshot(); obloads(sOB); p.restore(sn)
    e('L_nemb:')
    e(f's_cmp_ge_u32 s{sF}, 28')
    p.wait_all(vm=False); e('s_barrier')
    e('s_cbranch_scc1 L_noffn')
    stamp(p, cfg)
    main = matvec14(p, lambda tt, x: [f'{MF} {vr(ACC, 4)}, {x}, {frag(F_WG(tt))}, {"0" if tt == 0 else vr(ACC, 4)}',
                                      f'{MF} {vr(ACC + 4, 4)}, {x}, {frag(F_WU(tt))}, {"0" if tt == 0 else vr(ACC + 4, 4)}'])
    e(weave(main, stats_side(AB) + [f'v_mul_f32 v{RS}, v{RS}, v{RS}'], per=2))
    e(f'v_fmac_f32 v{ACC}, v{NEGM}, v{ACC+1}'); e(f'v_fmac_f32 v{ACC+4}, v{NEGM}, v{ACC+5}')
    e(f'v_max_f32 v{ACC}, 0, v{ACC}'); e(f'v_mul_f32 v{ACC+4}, v{RS}, v{ACC+4}'); e(f'v_mul_f32 v{ACC}, v{ACC}, v{ACC+4}')
    e(f'v_cvt_pk_bf16_f32 v{ACC}, v{ACC}, v{ACC}')
    e(f'ds_write_b16 v{vLwh}, v{ACC}')
    p.wait_all(vm=False); e('s_barrier')
    for tt in range(2):
        for k in range(4): e(f'ds_read_b128 {vr(G + 4 * (4 * tt + k), 4)}, v{vLrh} offset:{128 * k + 64 * tt}')
    for tt in range(2):
        for k in range(4):
            for s in range(2):
                first = tt == 0 and k == 0
                e(f'{MF} {vr(ACC + 4 * s, 4)}, {frag(F_WD(k, s, tt))}, {vr(G + 4 * (4 * tt + k), 4)}, {"0" if first else vr(ACC + 4 * s, 4)}')
            if tt == 1 and k == 0 and cfg.get('pre7', 1):
                e(f's_cmp_lg_u32 s{sJob}, 6'); e('s_cbranch_scc1 L_np7')
                e(f's_mov_b32 s{sT}, {OB0 + 7 * OBJ}'); e(f's_mov_b32 s{sPre}, 1')
                sn = p.snapshot(); obloads(sT); p.restore(sn)
                e('L_np7:')
    e(f's_cmp_lg_u32 s{sL2}, 0')
    for k in range(4): e(f'v_cvt_pk_bf16_f32 v{AB + k}, v{ACC + 2 * k}, v{ACC + 2 * k + 1}')
    e(f'buffer_store_dwordx4 {vr(AB, 4)}, v{vYp}, {srd(WS)}, s{sYB} offen sc1')
    e('s_cbranch_scc1 L_next')
    stamp(p, cfg)
    e(f's_mov_b32 s{sRet}, 1'); e(f's_cmp_lg_u32 s{sEmb}, 0'); e('s_waitcnt vmcnt(1)'); e('s_cbranch_scc1 L_s1b')
    e('L_ysp:')
    gsum('L_ys', sYB, 7, cfg.get('dYI', 0), cfg.get('dYL', 0))
    e(f's_cmp_lg_u32 s{sL2}, 0'); e('s_cbranch_scc1 L_out')
    e('L_x2:')
    e(f'ds_write_b64 v{vLw}, {vr(P, 2)} offset:{XB_L}')
    e(f'ds_write_b64 v{vRes}, {vr(P, 2)}')
    p.wait_all(vm=False); e('s_barrier')
    stamp(p, cfg)
    main = matvec14(p, lambda tt, x: [f'{MF} {vr(ACC + 4 * s, 4)}, {frag(F_WQ(s, tt))}, {x}, {"0" if tt == 0 else vr(ACC + 4 * s, 4)}' for s in range(2)])
    e(weave(main, stats_side(AB), per=2))
    for k in range(8): e(f'v_fmac_f32_dpp v{ACC + k}, v{ACC + k}, v{NEGM} quad_perm:[1,1,3,3] {DPPALL}')
    for k in range(8): e(f'v_mul_f32 v{ACC + k}, v{RS}, v{ACC + k}')
    e(f's_add_u32 s{sT}, s{sQB}, {QBL0 - QB0}')
    for k in range(4): e(f'v_cvt_pk_bf16_f32 v{AB + k}, v{ACC + 2 * k}, v{ACC + 2 * k + 1}')
    e(f'buffer_store_dwordx4 {vr(AB, 4)}, v{vQp}, {srd(WS)}, s{sT} offen')
    e(f'buffer_store_dwordx4 {vr(AB, 4)}, v{vQp}, {srd(WS)}, s{sQB} offen sc1')
    stamp(p, cfg)
    p.flush(); e('s_branch L_next')
    e('L_xsk:'); e('s_barrier'); e('s_branch L_xs')
    e('L_noffn:')
    e(f's_mov_b32 s{sRet}, 2'); e(f's_cmp_lg_u32 s{sEmb}, 0'); e('s_waitcnt vmcnt(0)'); e('s_cbranch_scc1 L_s1b')
    if cfg.get('dN'): e(f's_sleep {cfg["dN"]}')
    e('s_branch L_ysp')
    e('L_fin:')
    e(f's_sub_u32 s{sB}, s{sF}, 28'); e(f's_add_u32 s{sT}, s{sB}, 4'); e(f's_mov_b32 s{sPre}, 2')
    e('s_branch L_dec')
    e('L_out:')
    e(f'buffer_store_dwordx2 {vr(P, 2)}, v{vOut}, {srd(OUT)}, s{sOut} offen')
    stamp(p, cfg)
    e('s_branch L_next')
    for lab in ('L_xs', 'L_ys'): slow(p, lab, cfg.get('mask', 1), cfg.get('slX', 0))
    slow(p, 'L_s1', cfg.get('mask', 1), cfg.get('slO', 0)); slow(p, 'L_cnt')
    e('L_cend:')
    if cfg.get('stamps'):
        e(f's_lshl_b32 s4, s{sF}, 2'); e(f's_add_u32 s4, s4, s{sW}'); e('s_lshl_b32 s4, s4, 8'); e(f's_add_u32 s4, s4, {STAMP0}')
        e(f'v_and_b32 v1, 63, v0'); e('v_lshlrev_b32 v1, 2, v1')
        e(f'buffer_store_dword v{vSTAMP}, v1, {srd(WS)}, s4 offen')
    e('s_branch L_end')
```

```python
import sys, os, json
sys.path.insert(0, os.path.dirname(os.path.abspath(__file__)))
from asmlib import *
from common import *
import chain, attn

DEF = dict(D=6, T1=40, TQ1=44, TQ2=69)

def generate(cfg):
    c = dict(DEF); c.update(cfg)
    ref = open('cdna_kernels/' + KN + '.s.ref').read().split('\n')
    hdr = [l for l in ref if l.startswith(';') and '@launch' not in l]
    p = Prog()
    e = p.e
    if c.get('stamps'): e('s_memrealtime s[94:95]')
    e('s_cmp_ge_u32 s2, 256'); e('s_cbranch_scc1 L_end')
    e('s_lshr_b32 s97, s2, 3'); e('s_and_b32 s96, s2, 7')
    e('s_cmp_lt_u32 s2, 32')
    e('s_cbranch_scc1 ' + ('L_end' if c.get('mode') == 'attn' else 'L_chain'))
    if c.get('mode') == 'chain': e('s_branch L_end')
    attn.gen_attn(p, c)
    p.reset_queues(); p.hist = []
    chain.gen_chain(p, c)
    e('L_end:'); e('s_endpgm'); e('L_codeend:')
    o = hdr + ['; @launch grid=(256,1,1) block=(256,1,1) lds=163840',
               '.amdgcn_target "amdgcn-amd-amdhsa--gfx950"', '.text', f'.globl {KN}_kernel', '.p2align 8',
               f'.type {KN}_kernel,@function', f'{KN}_kernel:'] + p.out + [
               '.section .rodata,"a"', '.p2align 6', f'.amdhsa_kernel {KN}_kernel',
               '  .amdhsa_next_free_vgpr 512', '  .amdhsa_next_free_sgpr 102', '  .amdhsa_accum_offset 256',
               '  .amdhsa_group_segment_fixed_size 0', '  .amdhsa_kernarg_size 96', '  .amdhsa_user_sgpr_count 2',
               '  .amdhsa_user_sgpr_kernarg_segment_ptr 1', '  .amdhsa_system_sgpr_workgroup_id_x 1', '.end_amdhsa_kernel', '']
    return '\n'.join(o), p.ninstr

if __name__ == '__main__':
    out = sys.argv[1]
    cfg = {}
    for a in sys.argv[2:]:
        k, v = a.split('=')
        try: v = int(v, 0)
        except ValueError: pass
        cfg[k] = v
    s, n = generate(cfg)
    open(out, 'w').write(s)
    print(out, 'instrs', n, 'bytes', len(s))
```
